```python
import torch

def _softmax(x, axis=-1):
    return torch.softmax(x, dim=axis)
def _gelu(x):
    return torch.nn.functional.gelu(x, approximate="tanh")
def _silu(x):
    return torch.nn.functional.silu(x)
def _sigmoid(x):
    return torch.sigmoid(x)
def _layernorm(x, axis=-1, eps=1e-5):
    m = x.mean(dim=axis, keepdim=True)
    v = x.var(dim=axis, keepdim=True, unbiased=False)
    return (x - m) / torch.sqrt(v + eps)
def _scatter_add(tgt, idx, src, axis=0):
    return tgt.clone().index_add_(axis, idx, src)
def _segment_sum(src, seg, n):
    out = torch.zeros((n,) + src.shape[1:], dtype=src.dtype)
    return out.index_add_(0, seg, src)
def _pad(x, pw):
    flat = tuple(v for pair in reversed(pw) for v in pair)
    return torch.nn.functional.pad(x, flat)

kernel_name = 'interleave_layers__ssm_conv_h3__glu_gated_bilinear__prompt'

def setup_inputs():

    _w = (lambda a: (lambda t: t.to(torch.bfloat16) if t.is_floating_point() else t)(torch.as_tensor(a)))
    def _A_setup():
        B, S, D = 1, 2048, 640
        ks = 4
        return {
            "q": _w((lambda *s: torch.randn(*s, dtype=torch.bfloat16) * 0.05)(B, S, D)),
            "k": _w((lambda *s: torch.randn(*s, dtype=torch.bfloat16) * 0.2)(B, S, D)),
            "v": _w((lambda *s: torch.randn(*s, dtype=torch.bfloat16) * 0.2)(B, S, D)),
            "shift_k": _w((lambda *s: torch.randn(*s, dtype=torch.bfloat16) * 0.2)(D, ks) * 0.5),
            "ssm_k": _w((lambda *s: torch.randn(*s, dtype=torch.bfloat16) * 0.8)(D, S) * (1.0 / S ** 0.5)),
            "ssm_D": _w((lambda *s: torch.randn(*s, dtype=torch.bfloat16) * 0.2)(D)),
        }
    _A_in = _A_setup()

    def _B_setup():
        B, S, D, F = 1, 2048, 640, 1728
        return {
            "x": _w((lambda *s: torch.randn(*s, dtype=torch.bfloat16) * 0.05)(B, S, D)),
            "w_gate": _w((lambda *s: torch.randn(*s, dtype=torch.bfloat16) * 0.4)(D, F) * (D ** -0.5)),
            "w_up": _w((lambda *s: torch.randn(*s, dtype=torch.bfloat16) * 0.4)(D, F) * (D ** -0.5)),
            "w_down": _w((lambda *s: torch.randn(*s, dtype=torch.bfloat16) * 0.4)(F, D) * (F ** -0.5)),
        }
    _B_in = _B_setup()

    return {
        "A_q": _A_in["q"],
        "A_k": _A_in["k"],
        "A_v": _A_in["v"],
        "A_shift_k": _A_in["shift_k"],
        "A_ssm_k": _A_in["ssm_k"],
        "A_ssm_D": _A_in["ssm_D"],
        "B_x": _B_in["x"],
        "B_w_gate": _B_in["w_gate"],
        "B_w_up": _B_in["w_up"],
        "B_w_down": _B_in["w_down"],
    }

def reference(A_q, A_k, A_v, A_shift_k, A_ssm_k, A_ssm_D, B_x, B_w_gate, B_w_up, B_w_down):
    def _A_ref(q, k, v, shift_k, ssm_k, ssm_D):
        B, S, D = q.shape
        ks = shift_k.shape[-1]
        k_pad = _pad(k, ((0, 0), (ks - 1, 0), (0, 0)))
        k_shift = torch.zeros_like(k)
        for t in range(ks):
            k_shift = k_shift + k_pad[:, t:t + S, :] * shift_k[:, ks - 1 - t][None, None, :]
        kv = k_shift * v
        L = 2 * S
        kv_pad = _pad(kv, ((0, 0), (0, S), (0, 0)))
        kf_pad = _pad(ssm_k, ((0, 0), (0, S)))
        kv_f = (lambda x, axes=(-2,-1): torch.fft.rfft2(x.float(), dim=axes))(kv_pad[:, None, :, :], axes=(1, 2))
        kf_f = (lambda x, axes=(-2,-1): torch.fft.rfft2(x.float(), dim=axes))(kf_pad[:, None, :], axes=(1, 2))
        kf_f = (lambda x, *d: x.permute(*d))(kf_f, 1, 2, 0)
        y_f = kv_f * kf_f[None, :, :, :]
        y = (lambda x, s, axes=(-2,-1): torch.fft.irfft2(x, s=s, dim=axes).to(torch.bfloat16))(y_f, (1, L), axes=(1, 2))[:, 0, :S, :]
        y = y + kv * ssm_D[None, None, :]
        return q * y

    def _B_ref(x, w_gate, w_up, w_down):
        g = torch.einsum("bsd,df->bsf", x, w_gate)
        u = torch.einsum("bsd,df->bsf", x, w_up)
        h = g * u
        return torch.einsum("bsf,fd->bsd", h, w_down)

    x = A_q
    x = x + _A_ref(_layernorm(x, axis=-1), A_k, A_v, A_shift_k, A_ssm_k, A_ssm_D)
    x = x + _B_ref(_layernorm(x, axis=-1), B_w_gate, B_w_up, B_w_down)
    x = x + _A_ref(_layernorm(x, axis=-1), A_k, A_v, A_shift_k, A_ssm_k, A_ssm_D)
    x = x + _B_ref(_layernorm(x, axis=-1), B_w_gate, B_w_up, B_w_down)
    return x
```

```python
import re

REG_RE = re.compile(r'^(-|\|)?(abs\()?([vas])(\d+|\[(\d+):(\d+)\])\)?\|?$')
TRANS = ('v_exp_f32','v_log_f32','v_rcp_f32','v_rsq_f32','v_sqrt_f32','v_sin_f32','v_cos_f32','v_rcp_iflag_f32')

def regs_of(tok):
    tok = tok.strip()
    if tok in ('vcc',): return {('s','vcc')}
    if tok == 'exec': return {('s','exec')}
    if tok == 'm0': return {('s','m0')}
    m = REG_RE.match(tok)
    if not m: return set()
    k = m.group(3)
    if m.group(5) is not None:
        return {(k,i) for i in range(int(m.group(5)), int(m.group(6))+1)}
    return {(k,int(m.group(4)))}

class Ins:
    def __init__(self, text):
        self.text = text
        t = text.split(';')[0].strip()
        parts = t.split(None,1)
        self.mn = parts[0]
        rest = parts[1] if len(parts)>1 else ''
        ops = [o.strip() for o in rest.split(',')] if rest else []
        self.mods = ''
        if ops:
            joined = rest
            mm = re.search(r'\s(offen|idxen|offset:|offset0:|sc0|sc1|nt|lds|op_sel|neg_lo|neg_hi|row_|quad_perm|wave_|bound_ctrl|bank_mask|clamp|glc|cbsz|abid|blgp)', ' '+joined if False else joined)
            if mm:
                self.mods = joined[mm.start():]
                joined = joined[:mm.start()]
            ops = [o.strip() for o in joined.split(',')]
        self.ops = ops
        mn = self.mn
        self.cls = None
        R = [regs_of(o) for o in ops]
        self.w = set(); self.r = set()
        self.A=self.B=self.C=set()
        self.sdata=set()
        if mn.startswith('v_mfma'):
            self.cls='mfma'; self.w=R[0]; self.A=R[1]; self.B=R[2]; self.C=R[3]; self.r=R[1]|R[2]|R[3]
            self.passes = 8 if '32x32' in mn else 4
        elif mn.startswith('v_'):
            self.cls='valu'
            if mn.startswith('v_permlane') and 'swap' in mn:
                self.w=R[0]|R[1]; self.r=R[0]|R[1]
            elif mn.startswith('v_nop'):
                pass
            elif re.match(r'v_(add|sub|subrev)_co_u32|v_(addc|subb)_co_u32|v_mad_u64_u32', mn):
                self.w=R[0]|R[1]
                for x in R[2:]: self.r|=x
            else:
                self.w=R[0]
                for x in R[1:]: self.r|=x
                if mn.startswith('v_fmac') or mn.startswith('v_writelane') or mn.startswith('v_dot2c') or ('dpp' in mn and 'bound_ctrl' not in self.mods and ('row_shr' in self.mods or 'row_shl' in self.mods or 'bcast' in self.mods or 'wave_' in self.mods)):
                    self.r|=R[0]
            self.dpp = ('dpp' in mn)
        elif mn.startswith('buffer_') or mn.startswith('global_'):
            self.cls='vmem'
            self.lds = bool(re.search(r'\blds\b', self.mods)) or '_lds_' in mn
            if mn in ('buffer_inv','buffer_wbl2'):
                pass
            elif 'load' in mn and not self.lds:
                self.w=R[0]
                for x in R[1:]: self.r|=x
            else:
                for x in R: self.r|=x
                if 'store' in mn and ('x3' in mn or 'x4' in mn):
                    self.sdata = R[0] if mn.startswith('buffer_') else R[1]
            if self.lds: self.r|={('s','m0')}
        elif mn.startswith('ds_'):
            self.cls='ds'
            if 'read' in mn or 'permute' in mn or 'swizzle' in mn:
                self.w=R[0]
                for x in R[1:]: self.r|=x
            else:
                for x in R: self.r|=x
        elif mn.startswith('s_'):
            self.cls='salu'
            if mn.startswith(('s_cmp','s_cbranch','s_branch','s_waitcnt','s_nop','s_barrier','s_sleep','s_endpgm','s_setprio','s_bitcmp')):
                for x in R: self.r|=x
            else:
                if R: self.w=R[0]
                for x in R[1:]: self.r|=x
                if 'saveexec' in mn: self.w|={('s','exec')}
        else:
            raise ValueError('unknown instr '+text)
        self.states = 1
        if mn=='s_nop': self.states = int(ops[0],0)+1

def vec(s): return {x for x in s if x[0] in 'va'}
def sca(s): return {x for x in s if x[0]=='s'}

def need(p, c):
    n = 0
    if p.cls=='valu':
        pv = vec(p.w); ps = sca(p.w)
        if c.cls=='mfma' and pv & c.r: n=max(n,2)
        if c.cls=='valu':
            if c.mn.startswith(('v_readlane','v_readfirstlane')) and pv & c.r: n=max(n,1)
            if c.dpp and pv & c.r: n=max(n,2)
            if c.mn.startswith('v_permlane') and pv & c.r: n=max(n,2)
            if p.mn.replace('_e32','').replace('_e64','') in TRANS and pv & c.r: n=max(n,1)
            if ps & c.r:
                n=max(n,2)
                if c.mn.startswith(('v_readlane','v_writelane')): n=max(n,4)
        if c.cls=='vmem' and ps & c.r: n=max(n,5)
        if c.cls=='salu' and ps & c.r and not c.mn.startswith('s_cbranch'): n=max(n,1)
    if p.cls=='mfma':
        big = p.passes==8
        if c.cls=='mfma':
            if p.w & (c.A|c.B): n=max(n,12 if big else 8)
            if p.w & c.C and p.w != c.C: n=max(n,10 if big else 6)
            if p.w & c.w and not (p.w & c.C): n=max(n,10 if big else 6)
        elif c.cls in ('valu','vmem','ds'):
            if p.w & (c.r|c.w): n=max(n,12 if big else 8)
        if c.cls=='valu' and p.C & c.w: n=max(n,7 if big else 3)
    if p.cls=='salu' and ('s','m0') in p.w and c.cls=='vmem' and c.lds: n=max(n,1)
    if p.cls=='vmem' and p.sdata and (p.sdata & c.w):
        n=max(n,2 if c.cls=='valu' else 1)
    return n

class Asm:
    def __init__(self):
        self.items=[]
        self.vmq=[]; self.lgq=[]
        self.nlab=0
    def I(self, text):
        for ln in text.strip().split('\n'):
            ln=ln.strip()
            if not ln: continue
            self.items.append(('i',ln))
    def C(self, text): self.items.append(('c',text))
    def L(self, name): self.items.append(('l',name))
    def newlabel(self, base='L'):
        self.nlab+=1; return f'{base}_{self.nlab}'
    def VM(self, text, tag=None):
        self.I(text); self.vmq.append(tag)
    def LG(self, text, tag=None):
        self.I(text); self.lgq.append(tag)
    def _cnt(self, q, tags):
        if not isinstance(tags,(list,tuple,set)): tags=[tags]
        idx=-1
        for i,t in enumerate(q):
            if t in tags: idx=i
        if idx<0: return None
        return len(q)-1-idx
    def wait(self, vm=None, lg=None):
        parts=[]
        if vm is not None:
            n = 0 if vm=='all' else self._cnt(self.vmq, vm)
            if n is not None and (vm=='all' or True):
                n=min(n,63)
                if vm=='all' or n < len(self.vmq):
                    parts.append(f'vmcnt({n})'); self.vmq = self.vmq[len(self.vmq)-n:] if n else []
        if lg is not None:
            n = 0 if lg=='all' else self._cnt(self.lgq, lg)
            if n is not None:
                n=min(n,15)
                if lg=='all' or n < len(self.lgq):
                    parts.append(f'lgkmcnt({n})'); self.lgq = self.lgq[len(self.lgq)-n:] if n else []
        if parts: self.I('s_waitcnt '+' '.join(parts))
    def finalize(self):
        out=[]; hist=[]
        nnop=0
        for k,t in self.items:
            if k=='c': out.append('    ; '+t); continue
            if k=='l':
                out.append(t+':'); continue
            c=Ins(t)
            d=0; req=0
            for p in reversed(hist):
                n=need(p,c)
                if n-d>req: req=n-d
                d+=p.states
                if d>=12: break
            if req>0:
                nop=Ins(f's_nop {req-1}'); hist.append(nop); out.append(f'    s_nop {req-1}'); nnop+=1
            hist.append(c); hist=hist[-14:]
            out.append('    '+t)
        self.nnop=nnop
        return '\n'.join(out)+'\n'
```

```python
import sys, os
sys.path.insert(0, os.path.dirname(__file__))
from asmlib import Asm
NAME='interleave_layers__ssm_conv_h3__glu_gated_bilinear__prompt'
STAMPS = int(os.environ.get('STAMPS','0'))
STOP = os.environ.get('STOP','')
SPIN_LIMIT = 100000

KVF=0x0000000; X0T=0x0300000; ST0=0x0600000; CSUM=0x0610000; FLG=0x0620000; ST2=0x0640000
W1F=0x0700000; W2F=0x0C00000; X1F=0x0F00000; YP=0x1200000; X3F=0x1500000; H1F=0x1800000; H2F=0x2000000
STMP=0x2800000
WS_BYTES=268435456
FL_XA=FLG; FL_XB=FLG+0x400; FL_CS=FLG+0x800; FL_H=FLG+0x1000; FL_X3=FLG+0x6000; FL_DUMMY=FLG+0x9000
EPL=4160; CW=21248; UOFF=16640; RED=143360; YSTR=2112
def w1off(ks): return (19-ks)*7168
WS='s[36:39]'; DBG='s[40:43]'; OUT='s[44:47]'; TA='s[48:51]'; TB='s[52:55]'; TC='s[56:59]'
sX='s4'; sI='s5'; sW='s6'; sCG='s34'; sRB='s60'; sFS='s61'; sTB='s62'; sCS='s63'; sSPIN='s96'
vL='v1'; vL16='v2'; vLo='v3'; vG='v4'; vL4='v5'; vST='v15'

a=Asm()
def R(b,n=4,k='v'): return f'{k}[{b}:{b+n-1}]' if n>1 else f'{k}{b}'
def srd(dst, ptr, nbytes):
    d=int(dst[2:dst.index(':')])
    a.I(f's_mov_b32 s{d}, s{ptr}\ns_mov_b32 s{d+1}, s{ptr+1}\ns_mov_b32 s{d+2}, {nbytes}\ns_mov_b32 s{d+3}, 0x20000')
nstamp=[0]
def stamp(name):
    if not STAMPS: return
    k=nstamp[0]; nstamp[0]+=1
    a.C(f'stamp {k}: {name}')
    a.I(f's_memtime s[98:99]'); a.I('s_waitcnt lgkmcnt(0)'); a.lgq=[]
    a.I(f'v_writelane_b32 {vST}, s98, {k}')
    stamp_names.append(name)
stamp_names=[]

def poll(srdname, voff, soff, vmask, vt, wide=False):
    L=a.newlabel('Lpoll'); Ld=a.newlabel('Lpd')
    a.I(f's_mov_b32 {sSPIN}, 0')
    a.L(L)
    if wide:
        a.I(f'buffer_load_dwordx4 {R(vt)}, {voff}, {srdname}, {soff} offen sc1')
        a.I('s_waitcnt vmcnt(0)')
        a.I(f'v_and_b32 v{vt}, v{vt}, v{vt+1}\nv_and_b32 v{vt+2}, v{vt+2}, v{vt+3}\nv_and_b32 v{vt}, v{vt}, v{vt+2}')
    else:
        a.I(f'buffer_load_dword v{vt}, {voff}, {srdname}, {soff} offen sc1')
        a.I('s_waitcnt vmcnt(0)')
    a.I(f'v_and_b32 v{vt}, v{vt}, {vmask}')
    a.I(f'v_cmp_ne_u32 vcc, v{vt}, {vmask}')
    a.I(f's_cbranch_vccz {Ld}')
    a.I(f's_sleep 1\ns_add_u32 {sSPIN}, {sSPIN}, 1\ns_cmp_lt_u32 {sSPIN}, {SPIN_LIMIT}\ns_cbranch_scc1 {L}')
    a.L(Ld)
    a.vmq=[]

def range_mask(vd, lo, n, val, vt):
    a.I(f'v_subrev_u32 v{vt}, {lo}, {vL}')
    a.I(f'v_cmp_gt_u32 vcc, {n}, v{vt}')
    a.I(f'v_mov_b32 v{vt}, {val}')
    a.I(f'v_cndmask_b32 v{vd}, 0, v{vt}, vcc')

def wg_signal_byte(soff, val):
    a.wait(vm='all')
    a.I('s_barrier')
    Ls=a.newlabel('Lsig')
    a.I(f's_cmp_lg_u32 {sW}, 0\ns_cbranch_scc1 {Ls}')
    a.I(f's_mov_b64 exec, 1\nv_mov_b32 v14, {val}\nbuffer_store_byte v14, off, {DBG}, {soff} sc1\ns_mov_b64 exec, -1')
    a.L(Ls)
    a.vmq=['sig']
def wg_signal_word(soff):
    a.wait(vm='all')
    a.I('s_barrier')
    Ls=a.newlabel('Lsig')
    a.I(f's_cmp_lg_u32 {sW}, 0\ns_cbranch_scc1 {Ls}')
    a.I(f's_mov_b64 exec, 1\nv_mov_b32 v14, 1\nbuffer_store_dword v14, off, {WS}, {soff} sc1\ns_mov_b64 exec, -1')
    a.L(Ls)
    a.vmq=['sig']
def wave_signal_word(soff):
    a.I(f's_mov_b64 exec, 1\nv_mov_b32 v14, 1')
    a.VM(f'buffer_store_dword v14, off, {WS}, {soff} sc1','sig')
    a.I('s_mov_b64 exec, -1')

def bf16round(vd, vs):
    a.I(f'v_cvt_pk_bf16_f32 v{vd}, v{vs}, v{vs}\nv_lshlrev_b32 v{vd}, 16, v{vd}')
def ln_scalars(vm, vvar):
    bf16round(vm,vm); bf16round(vvar,vvar)
    a.I(f'v_add_f32 v{vvar}, 0x3727c5ac, v{vvar}')
    bf16round(vvar,vvar)
    a.I(f'v_sqrt_f32 v{vvar}, v{vvar}')
    bf16round(vvar,vvar)
    a.I(f'v_rcp_f32 v{vvar}, v{vvar}')
def unpack(dlo, dhi, src):
    a.I(f'v_lshlrev_b32 v{dlo}, 16, v{src}\nv_and_b32 v{dhi}, 0xffff0000, v{src}')

def prologue():
    a.I(f'''s_cmp_ge_u32 s2, 256
s_cbranch_scc1 L_end
s_load_dwordx16 s[8:23], s[0:1], 0
s_load_dwordx8 s[24:31], s[0:1], 64
s_load_dwordx2 s[32:33], s[0:1], 96
s_getpc_b64 s[64:65]''')
    a.L('L_pc')
    a.I(f'''v_and_b32 {vL}, 63, v0
v_lshrrev_b32 v6, 6, v0
v_lshlrev_b32 v7, 7, v0
v_readfirstlane_b32 {sW}, v6
v_min_u32 v8, L_end-L_pc, v7
v_add_u32 v7, 0x8000, v7
v_min_u32 v7, L_end-L_pc, v7''')
    a.VM('global_load_dword v8, v8, s[64:65]')
    a.VM('global_load_dword v7, v7, s[64:65]')
    a.I(f'''v_lshlrev_b32 {vL16}, 4, {vL}
v_and_b32 {vLo}, 15, {vL}
v_lshrrev_b32 {vG}, 4, {vL}
v_lshlrev_b32 {vL4}, 2, {vL}
v_mov_b32 {vST}, 0
s_and_b32 {sX}, s2, 7
s_lshr_b32 {sI}, s2, 3
s_lshr_b32 s3, {sI}, 3
s_and_b32 {sCS}, {sI}, 7
s_and_b32 s7, {sX}, 1
s_lshl_b32 s7, s7, 2
s_add_u32 {sRB}, s7, s3
s_lshr_b32 s7, {sX}, 1
s_lshl_b32 s7, s7, 3
s_add_u32 {sFS}, s7, {sCS}
s_lshl_b32 s7, {sX}, 2
s_add_u32 {sTB}, s7, s3
s_mul_i32 {sCG}, {sX}, 20
s_add_u32 {sCG}, {sCG}, {sI}
s_waitcnt lgkmcnt(0)''')
    srd(WS,32,WS_BYTES); srd(DBG,30,256); srd(OUT,28,2048*640*2)
    stamp('start')
    a.C('zero own flags')
    a.I(f'''s_lshl_b32 s3, {sRB}, 2
s_add_u32 s3, s3, {sW}
s_lshl_b32 s3, s3, 7
s_lshl_b32 s7, {sFS}, 2
s_add_u32 s3, s3, s7
s_add_u32 s66, s3, {FL_H}
v_lshlrev_b32 v6, 12, {vL}
v_add_u32 v6, s66, v6
s_lshl_b32 s3, {sTB}, 7
s_lshl_b32 s7, {sCS}, 4
s_add_u32 s3, s3, s7
s_lshl_b32 s7, {sW}, 2
s_add_u32 s3, s3, s7
s_add_u32 s67, s3, {FL_X3}
v_writelane_b32 v6, s67, 4
s_add_u32 s3, s67, 4096
v_writelane_b32 v6, s3, 5
s_lshl_b32 s3, {sCG}, 2
s_add_u32 s3, s3, {FL_XA}
s_cmp_lt_u32 {sI}, 20
s_cselect_b32 s68, s3, {FL_DUMMY}
v_writelane_b32 v6, s68, 6
s_add_u32 s3, s68, 0x400
v_writelane_b32 v6, s3, 7
s_lshl_b32 s3, {sFS}, 2
s_add_u32 s3, s3, {FL_CS}
s_cmp_eq_u32 {sRB}, 3
s_cselect_b32 s3, s3, {FL_DUMMY}
v_writelane_b32 v6, s3, 8
v_mov_b32 v10, 0
v_mov_b32 v11, 0
v_mov_b32 v12, 0
v_mov_b32 v13, 0
s_mov_b64 exec, 0x1ff''')
    a.VM(f'buffer_store_dword v10, v6, {WS}, 0 offen sc1')
    a.I(f'''s_mov_b64 exec, 0xffff
v_lshrrev_b32 v6, 3, {vL}
v_lshlrev_b32 v6, 10, v6
v_and_b32 v9, 4, {vL}
v_lshl_add_u32 v6, v9, 2, v6
v_and_b32 v9, 3, {vL}
v_add_u32 v6, v6, v9
v_lshlrev_b32 v6, 7, v6
s_lshl_b32 s3, {sTB}, 5
s_lshl_b32 s7, {sW}, 2
s_add_u32 s3, s3, s7
s_lshl_b32 s3, s3, 7
s_add_u32 s69, s3, {ST2}
s_lshl_b32 s7, {sCS}, 4
s_add_u32 s3, s69, s7''')
    a.VM(f'buffer_store_dwordx4 v[10:13], v6, {WS}, s3 offen sc1')
    a.I('s_mov_b64 exec, -1')
    a.I(f's_cmp_ge_u32 {sI}, 20\ns_cbranch_scc1 L_helper')

def p0():
    a.C('P0: kv and x0 transposition')
    srd(TA,10,2048*1280); srd(TB,12,2048*1280); srd(TC,14,640*8)
    a.I(f'''s_and_b32 s70, {sCG}, 15
s_lshr_b32 s71, {sCG}, 4
s_and_b32 s3, {sW}, 1
s_lshr_b32 s7, {sW}, 1
v_and_b32 v20, 7, {vL}
v_lshrrev_b32 v21, 3, {vL}
s_lshl_b32 s72, s7, 3
s_lshl_b32 s73, s71, 4
s_add_u32 s72, s72, s73
v_add_u32 v20, s72, v20
s_lshl_b32 s72, s3, 3
s_lshl_b32 s73, s70, 4
s_add_u32 s72, s72, s73
v_add_u32 v22, s72, v21''')
    a.I(f'''v_mul_u32_u24 v23, 10240, v22
v_lshl_add_u32 v23, v20, 3, v23
v_subrev_u32 v24, 3840, v23
v_lshlrev_b32 v25, 5, v20
s_movk_i32 s74, 5120''')
    KB=32
    VB=54
    SB=72
    a.VM(f'buffer_load_dwordx4 {R(SB)}, v25, {TC}, 0 offen','sh')
    a.VM(f'buffer_load_dwordx4 {R(SB+4)}, v25, {TC}, 0 offen offset:16','sh')
    for j in range(3):
        a.VM(f'buffer_load_dwordx2 {R(KB+2*j,2)}, v24, {TA}, 0 offen offset:{1280*j}',f'k{j}')
    for j in range(8):
        so = '0' if j<4 else 's74'
        a.VM(f'buffer_load_dwordx2 {R(KB+6+2*j,2)}, v23, {TA}, {so} offen offset:{1280*(j&3)}',f'k{j+3}')
        a.VM(f'buffer_load_dwordx2 {R(VB+2*j,2)}, v23, {TB}, {so} offen offset:{1280*(j&3)}',f'v{j}')
    srd(TC,16,640*4096)
    a.I(f'''s_lshl_b32 s75, {sCG}, 2
s_add_u32 s75, s75, {sW}
s_lshl_b32 s76, s75, 12''')
    EB=160
    for cgp in range(4):
        for m in range(4):
            a.VM(f'buffer_load_dwordx3 {R(EB+16*cgp+4*m,3)}, {vL16}, {TC}, s76 offen offset:{cgp*1024+4*m}',f'e{cgp}{m}')
    srd(TB,8,2048*1280)
    QB=224
    a.I(f'''s_lshl_b32 s72, s3, 6
s_lshl_b32 s73, s70, 7
s_add_u32 s72, s72, s73
v_lshl_add_u32 v26, v21, 1, s72
v_mul_u32_u24 v27, 1280, v26
v_lshl_add_u32 v27, v20, 3, v27
v_lshlrev_b32 v28, 14, v20
v_lshl_add_u32 v28, v26, 3, v28''')
    for j in range(4):
        a.I(f's_mov_b32 s72, {20480*j}')
        a.VM(f'buffer_load_dwordx2 {R(QB+4*j,2)}, v27, {TB}, s72 offen','q')
        a.VM(f'buffer_load_dwordx2 {R(QB+4*j+2,2)}, v27, {TB}, s72 offen offset:1280','q')
    a.I(f'''s_lshr_b32 s72, s75, 1
s_lshl_b32 s72, s72, 2
s_load_dword s77, s[18:19], s72''')
    WB=80
    a.wait(vm='sh')
    for c in range(4):
        unpack(WB+0*4+c, WB+1*4+c, SB+2*c)
        unpack(WB+2*4+c, WB+3*4+c, SB+2*c+1)
    KF=96
    def unk(j):
        a.wait(vm=f'k{j}')
        unpack(KF+4*j, KF+4*j+1, KB+2*j); unpack(KF+4*j+2, KF+4*j+3, KB+2*j+1)
    for j in range(3): unk(j)
    VF=140
    for s in range(8):
        unk(s+3)
        a.wait(vm=f'v{s}')
        unpack(VF, VF+1, VB+2*s); unpack(VF+2, VF+3, VB+2*s+1)
        for h in range(2):
            d=KF+4*s+2*h
            a.I(f'v_pk_mul_f32 {R(d,2)}, {R(d,2)}, {R(WB+12+2*h,2)}')
        for t,wj in ((1,2),(2,1),(3,0)):
            for h in range(2):
                d=KF+4*s+2*h
                a.I(f'v_pk_fma_f32 {R(d,2)}, {R(KF+4*(s+t)+2*h,2)}, {R(WB+4*wj+2*h,2)}, {R(d,2)}')
        for h in range(2):
            d=KF+4*s+2*h
            a.I(f'v_pk_mul_f32 {R(d,2)}, {R(d,2)}, {R(VF+2*h,2)}')
    a.I(f'''v_lshlrev_b32 v29, 14, v20
v_lshl_add_u32 v29, v22, 4, v29''')
    PB=144
    for c in range(4):
        for m in range(4):
            a.I(f'v_cvt_pk_bf16_f32 v{PB+4*c+m}, v{KF+4*(7-2*m)+c}, v{KF+4*(6-2*m)+c}')
        a.I(f's_mov_b32 s72, {KVF+4096*c}')
        a.VM(f'buffer_store_dwordx4 {R(PB+4*c)}, v29, {WS}, s72 offen sc1','kvst')
    stamp('p0 stored')
    wg_signal_byte(sCG,1)
    stamp('p0 signalled')
    a.I(f's_mov_b32 s72, {X0T}')
    for j in range(4):
        a.VM(f'buffer_store_dwordx4 {R(QB+4*j)}, v28, {WS}, s72 offen offset:{128*j} sc1','qst')
    a.C('E4 build')
    a.I(f'''s_mul_i32 s78, {sW}, {CW}
v_add_u32 v30, s78, {vL16}''')
    for cgp in range(4):
        for m in range(4):
            b=EB+16*cgp+4*m
            a.I(f'v_alignbit_b32 v{b+3}, v{b+2}, v{b+1}, 16\nv_alignbit_b32 v{b+2}, v{b+1}, v{b}, 16')
            a.LG(f'ds_write_b128 v30, {R(b)} offset:{32+m*EPL+cgp*1024}')
    a.I(f'''v_readfirstlane_b32 s72, v{EB}
v_readfirstlane_b32 s73, v{EB+2}
v_mov_b32 v32, 0
v_mov_b32 v33, 0
v_mov_b32 v34, 0
v_mov_b32 v35, 0
s_mov_b32 exec_hi, 0''')
    a.LG(f'ds_write_b128 v30, v[32:35] offset:{UOFF}')
    a.I(f'''s_mov_b64 exec, -1
s_lshl_b32 s79, s72, 16
v_mov_b32 v36, 0
v_mov_b32 v37, 0
v_mov_b32 v38, 0
v_mov_b32 v39, 0
v_writelane_b32 v39, s79, 5
v_writelane_b32 v37, s72, 7
v_writelane_b32 v38, s79, 7
v_writelane_b32 v39, s73, 7
v_lshrrev_b32 v31, 1, {vL}
v_mul_u32_u24 v31, {EPL}, v31
v_and_b32 v40, 1, {vL}
v_lshl_add_u32 v31, v40, 4, v31
v_add_u32 v31, s78, v31
s_mov_b64 exec, 0xff''')
    a.LG(f'ds_write_b128 v31, v[36:39]')
    a.I('s_mov_b64 exec, -1')
    wg_signal_byte(sCG,3)
    a.I(f'''s_waitcnt lgkmcnt(0)
s_lshl_b32 s72, s77, 16
s_and_b32 s73, s77, 0xffff0000
s_bitcmp1_b32 s75, 0
s_cselect_b32 s77, s73, s72''')
    a.lgq=[]
    stamp('e4 built')

def conv():
    a.C('conv')
    a.I(f's_lshl_b32 s72, s71, 2')
    range_mask(20,'s72',4,'0x01010101',21)
    poll(DBG,vL4,'0','v20',21)
    stamp('kv ready')
    a.I(f's_add_u32 s72, s76, {KVF}')
    for j in range(4):
        a.VM(f'buffer_load_dwordx4 {R(32+4*j)}, {vL16}, {WS}, s72 offen offset:{1024*j} sc1',f'u{j}')
    a.I(f'''v_lshlrev_b32 v21, 3, {vG}
v_sub_u32 v21, {vLo}, v21
v_add_u32 v21, 25, v21''')
    for (dst,add) in ((22,0),(23,4)):
        a.I(f'''v_add_u32 v24, {add}, v21
v_bfe_u32 v25, v24, 1, 2
v_mul_u32_u24 v25, {EPL}, v25
v_lshrrev_b32 v26, 3, v24
v_lshl_add_u32 v25, v26, 4, v25
v_and_b32 v26, 1, v24
v_lshl_add_u32 v25, v26, 3, v25
v_add_u32 v{dst}, s78, v25''')
    a.I(f'''v_lshl_add_u32 v24, {vLo}, 1, {vG}
v_lshlrev_b32 v24, 4, v24
s_add_u32 s72, s78, {UOFF+512-32-448}
v_add_u32 v24, s72, v24''')
    vT1,vT2,vU=22,23,24
    for j in range(4):
        a.wait(vm=f'u{j}')
        a.LG(f'ds_write_b128 v30, {R(32+4*j)} offset:{UOFF+512+1024*j}')
    a.wait(lg='all')
    a.I(f'''v_lshrrev_b32 v25, 1, {vG}
v_lshl_add_u32 v25, {vLo}, 1, v25
v_lshlrev_b32 v25, 4, v25
v_and_b32 v26, 1, {vG}
v_lshlrev_b32 v26, 3, v26
v_sub_u32 v25, v25, v26
s_add_u32 s72, s78, {UOFF+512+8}
v_add_u32 v25, s72, v25
v_lshlrev_b32 v26, 5, {vLo}
v_lshl_add_u32 v26, {vG}, 3, v26
s_mul_i32 s72, {sW}, {YSTR}
s_add_u32 s72, s72, {RED}
v_add_u32 v26, s72, v26
v_lshrrev_b32 v27, 2, {vLo}
v_mul_u32_u24 v27, {YSTR}, v27
v_and_b32 v28, 3, {vL}
v_lshl_add_u32 v27, v28, 3, v27
v_lshl_add_u32 v27, {vG}, 5, v27
s_lshl_b32 s72, {sW}, 9
s_add_u32 s72, s72, {RED}
v_add_u32 v27, s72, v27
v_lshlrev_b32 v28, 3, {vL}
v_mul_u32_u24 v29, 20480, {vG}
v_lshl_add_u32 v31, {vLo}, 3, v29
v_lshl_add_u32 v29, {vLo}, 4, v29''')
    vKV,vYW,vYR,vL8,vX1,vYo=25,26,27,28,29,31
    ACC=32
    FB=[64,128]
    def half(hf):
        na = 4 if hf==0 else 8
        pairs=[(ap,c) for ap in range(na) for c in range(na) if (ap+c<=3 if hf==0 else 4<=ap+c<=7)]
        pairs.sort(key=lambda p:(max(p[0],p[1]) if hf==0 else p[0], p[1]))
        def reads(r):
            fb=FB[r&1]; out=[]; seen=set()
            for (ap,c) in pairs:
                if ('T',ap) not in seen:
                    seen.add(('T',ap))
                    out.append((f'ds_read_b64 {R(fb+4*ap,2)}, v{vT1} offset:{ap*512+r*64}',f'T{r}{ap}a'))
                    out.append((f'ds_read_b64 {R(fb+4*ap+2,2)}, v{vT2} offset:{ap*512+r*64}',f'T{r}{ap}'))
                if ('U',c) not in seen:
                    seen.add(('U',c))
                    out.append((f'ds_read_b128 {R(fb+32+4*c)}, v{vU} offset:{c*512+(7-r)*64}',f'U{r}{c}'))
            return out
        for t,g in reads(0): a.LG(t,g)
        first=set()
        for r in range(8):
            nxt = reads(r+1) if r<7 else []
            fb=FB[r&1]
            per = -(-len(nxt)//len(pairs))
            for (ap,c) in pairs:
                a.wait(lg=[f'T{r}{ap}',f'U{r}{c}'])
                j=ap+c
                cc = R(ACC+4*j) if j in first else '0'
                first.add(j)
                a.I(f'v_mfma_f32_16x16x32_bf16 {R(ACC+4*j)}, {R(fb+4*ap)}, {R(fb+32+4*c)}, {cc}')
                for _ in range(per):
                    if nxt:
                        t,g=nxt.pop(0); a.LG(t,g)
            assert not nxt
    def epi(hf):
        XB=192; SBB=200; KVB=208; TMP=216; YB=224
        a.I(f'''s_lshl_b32 s72, {sW}, 11
s_add_u32 s73, s72, {ST0+hf*8192}
s_lshl_b32 s74, {sCG}, 14
s_add_u32 s72, s72, s74
s_add_u32 s72, s72, {X0T+hf*8192}''')
        for it in range(4):
            a.VM(f'buffer_load_dwordx2 {R(XB+2*it,2)}, v{vL8}, {WS}, s72 offen offset:{512*it} sc1',f'x{it}')
            a.VM(f'buffer_load_dwordx2 {R(SBB+2*it,2)}, v{vL8}, {WS}, s73 offen offset:{512*it} sc1',f's{it}')
        for jl in range(4):
            a.LG(f'ds_read_b64 {R(KVB+2*jl,2)}, v{vKV} offset:{(4*hf+jl)*512}',f'kv{jl}')
        if hf==1: a.I('s_barrier')
        for jl in range(4):
            j=4*hf+jl; ac=ACC+4*j
            a.wait(lg=f'kv{jl}')
            unpack(TMP+3,TMP+2,KVB+2*jl); unpack(TMP+1,TMP+0,KVB+2*jl+1)
            for r in range(4): a.I(f'v_fmac_f32 v{ac+r}, s77, v{TMP+r}')
            a.I(f'v_cvt_pk_bf16_f32 v{ac}, v{ac}, v{ac+1}\nv_cvt_pk_bf16_f32 v{ac+1}, v{ac+2}, v{ac+3}')
            a.LG(f'ds_write_b64 v{vYW}, {R(ac,2)} offset:{512*jl}')
        a.wait(lg='all'); a.I('s_barrier')
        for it in range(4):
            a.LG(f'ds_read_b64_tr_b16 {R(YB+2*it,2)}, v{vYR} offset:{128*it}',f'y{it}')
        a.I(f'''s_mul_i32 s72, {sW}, {16*20480}
s_lshr_b32 s73, {sCG}, 1
s_lshl_b32 s73, s73, 8
s_and_b32 s74, {sCG}, 1
s_lshl_b32 s74, s74, 3
s_add_u32 s73, s73, s74
s_add_u32 s73, s73, s72
s_add_u32 s73, s73, {X1F+hf*64*20480}
s_lshl_b32 s74, {sCG}, 7
s_add_u32 s74, s74, s72
s_add_u32 s74, s74, {YP+hf*64*20480}''')
        for it in range(4):
            a.wait(vm=[f'x{it}',f's{it}'], lg=f'y{it}')
            X=232; Y=236; T=240
            unpack(X,X+1,XB+2*it); unpack(X+2,X+3,XB+2*it+1)
            unpack(Y,Y+1,YB+2*it); unpack(Y+2,Y+3,YB+2*it+1)
            for e in range(4): a.I(f'v_sub_f32 v{T+e}, v{X+e}, v{SBB+2*it}')
            for e in range(4): a.I(f'v_mul_f32 v{T+e}, v{T+e}, v{SBB+2*it+1}')
            for e in range(4): a.I(f'v_fmac_f32 v{X+e}, v{T+e}, v{Y+e}')
            a.I(f'v_cvt_pk_bf16_f32 v{XB+2*it}, v{X}, v{X+1}\nv_cvt_pk_bf16_f32 v{XB+2*it+1}, v{X+2}, v{X+3}')
            a.VM(f'buffer_store_dwordx2 {R(XB+2*it,2)}, v{vX1}, {WS}, s73 offen sc1','st')
            a.VM(f'buffer_store_dwordx2 {R(YB+2*it,2)}, v{vYo}, {WS}, s74 offen sc1','st')
            if it<3: a.I(f's_add_u32 s73, s73, {4*20480}\ns_add_u32 s74, s74, {4*20480}')
    half(0)
    stamp('convA')
    a.I(f's_lshl_b32 s72, s71, 2')
    range_mask(20,'s72',4,'0x02020202',21)
    range_mask(19,40,24,'0x02020202',21)
    a.I('v_or_b32 v20, v20, v19')
    poll(DBG,vL4,'0','v20',21)
    stamp('x0 ready')
    epi(0)
    wg_signal_word('s68')
    stamp('epiA')
    half(1)
    stamp('convB')
    epi(1)
    a.I('s_add_u32 s72, s68, 0x400')
    wg_signal_word('s72')
    stamp('epiB')
    a.I('s_branch L_join')

def helper():
    a.L('L_helper')
    a.vmq=['x']; a.lgq=[]
    sHX='s70'
    a.I(f'''s_mul_i32 {sHX}, {sX}, 12
s_add_u32 {sHX}, {sHX}, {sI}
s_sub_u32 {sHX}, {sHX}, 20
s_add_u32 s71, {sHX}, 160''')
    a.I(f'''v_bfe_u32 v20, {vL}, 2, 2
v_and_b32 v21, 3, {vL}''')
    a.I(f's_cmp_ge_u32 {sHX}, 80\ns_cbranch_scc1 L_h1done')
    srd(TA,22,640*3456); srd(TB,24,640*3456)
    a.I(f'''s_mul_i32 s72, {sHX}, 205
s_lshr_b32 s72, s72, 12
s_mul_i32 s73, s72, 20
s_sub_u32 s73, {sHX}, s73
v_mul_u32_u24 v22, 37, {vL}
v_lshrrev_b32 v22, 8, v22
v_lshlrev_b32 v22, 2, v22
v_sub_u32 v22, {vL16}, v22
s_mul_i32 s74, s72, 864
v_add_u32 v22, s74, v22
s_lshl_b32 s74, s73, 5
s_lshl_b32 s75, {sW}, 3
s_add_u32 s74, s74, s75
s_mul_i32 s74, s74, 3456
s_mul_i32 s75, s75, 1040''')
    for j in range(8):
        for mat,sr in ((0,TA),(1,TB)):
            a.I(f's_add_u32 m0, s75, {mat*33280+j*1040}')
            a.VM(f'buffer_load_dwordx4 v22, {sr}, s74 offen lds')
        a.I('s_add_u32 s74, s74, 3456')
    a.I(f'''v_lshl_add_u32 v23, {vG}, 3, v20
v_mul_u32_u24 v23, 1040, v23
s_mul_i32 s74, {sW}, 224
v_add_u32 v23, s74, v23
v_lshl_add_u32 v24, v21, 4, v23
v_lshl_add_u32 v25, v21, 3, v23
v_and_b32 v26, 1, v21
v_lshl_add_u32 v26, v26, 3, v23
v_lshrrev_b32 v27, 1, v21
v_mul_u32_u24 v27, 33280, v27
v_add_u32 v26, v26, v27''')
    a.I(f'''v_and_b32 v27, 6, {vL}
v_cmp_ne_u32 vcc, 6, v27
v_cndmask_b32 v28, 0, -1, vcc
v_cmp_eq_u32 vcc, 6, {vLo}
v_mov_b32 v27, 0x3f803f80
v_cndmask_b32 v29, 0, v27, vcc
s_lshl_b32 s74, s72, 3
s_lshl_b32 s75, {sW}, 1
s_add_u32 s74, s74, s75
s_mul_i32 s74, s74, 143360
s_mul_i32 s75, s73, 7168
s_add_u32 s74, s74, s75
s_add_u32 s74, s74, {W1F}''')
    a.wait(vm='all'); a.I('s_barrier')
    for sl in range(2):
        for t in range(7):
            b=32+28*sl+4*t
            if t<6:
                mat=t//3; p=t%3
                va = 24 if p<2 else 25
                off = mat*33280 + sl*112 + (8 if p==1 else 0) + (64 if p==2 else 0)
            else:
                va=26; off=sl*112+96
            a.LG(f'ds_read_b64_tr_b16 {R(b,2)}, v{va} offset:{off}')
            a.LG(f'ds_read_b64_tr_b16 {R(b+2,2)}, v{va} offset:{off+4*1040}',f'w{sl}{t}')
    for sl in range(2):
        for t in range(7):
            b=32+28*sl+4*t
            a.wait(lg=f'w{sl}{t}')
            if t==6:
                for e in range(4): a.I(f'v_and_or_b32 v{b+e}, v{b+e}, v28, v29')
            if t==4: a.I('s_add_u32 s74, s74, 4096')
            a.VM(f'buffer_store_dwordx4 {R(b)}, {vL16}, {WS}, s74 offen offset:{(t&3)*1024} sc1')
        a.I(f's_add_u32 s74, s74, {143360-4096}')
    a.L('L_h1done')
    wg_signal_byte('s71',1)
    stamp('h: w1 done')
    a.I(f's_cmp_lt_u32 {sHX}, 32\ns_cbranch_scc1 L_h2done')
    srd(TA,8,2048*1280)
    a.I(f'''s_sub_u32 s72, {sHX}, 32
s_lshl_b32 s72, s72, 5
s_lshl_b32 s73, {sW}, 3
s_add_u32 s72, s72, s73
s_mul_i32 s73, s72, 1280
s_add_u32 s74, s73, 5120
v_mul_u32_u24 v22, 1280, {vG}
v_lshl_add_u32 v22, {vLo}, 4, v22
s_lshl_b32 s72, s72, 3
s_add_u32 s72, s72, {ST0}
v_lshlrev_b32 v23, 3, {vG}''')
    for st in range(2):
        for i in range(5):
            a.VM(f'buffer_load_dwordx4 {R(32+20*st+4*i)}, v22, {TA}, s{73+st} offen offset:{256*i}',f'q{st}')
    def rowred(v):
        for k in (8,4,2,1):
            a.I(f'v_add_f32_dpp v{v}, v{v}, v{v} row_ror:{k} row_mask:0xf bank_mask:0xf')
    for st in range(2):
        a.wait(vm=f'q{st}')
        Fb=80
        for i in range(20): unpack(Fb+2*i,Fb+2*i+1,32+20*st+i)
        a.I(f'v_pk_add_f32 v[24:25], {R(Fb,2)}, {R(Fb+2,2)}')
        for i in range(2,20): a.I(f'v_pk_add_f32 v[24:25], v[24:25], {R(Fb+2*i,2)}')
        a.I('v_add_f32 v24, v24, v25')
        rowred(24)
        a.I('v_mul_f32 v24, 0x3acccccd, v24')
        for i in range(20): a.I(f'v_pk_add_f32 {R(Fb+2*i,2)}, {R(Fb+2*i,2)}, v[24:25] op_sel_hi:[1,0] neg_lo:[0,1] neg_hi:[0,1]')
        a.I(f'v_pk_mul_f32 v[26:27], {R(Fb,2)}, {R(Fb,2)}')
        for i in range(1,20): a.I(f'v_pk_fma_f32 v[26:27], {R(Fb+2*i,2)}, {R(Fb+2*i,2)}, v[26:27]')
        a.I('v_add_f32 v25, v26, v27')
        rowred(25)
        a.I('v_mul_f32 v25, 0x3acccccd, v25')
        ln_scalars(24,25)
        a.I('s_mov_b32 exec_lo, 0x00010001\ns_mov_b32 exec_hi, 0x00010001')
        a.VM(f'buffer_store_dwordx2 v[24:25], v23, {WS}, s72 offen offset:{32*st} sc1')
        a.I('s_mov_b64 exec, -1\ns_nop 1')
    a.L('L_h2done')
    wg_signal_byte('s71',3)
    stamp('h: q done')
    a.I(f'''s_sub_u32 s72, {sHX}, 32
s_cmp_lt_u32 s72, 32
s_cbranch_scc1 L_h3done
s_cmp_lt_u32 {sHX}, 32
s_cselect_b32 s72, {sHX}, s72
s_lshr_b32 s73, s72, 1
s_and_b32 s72, s72, 1''')
    srd(TA,26,1728*1280)
    a.I(f'''s_mul_i32 s74, s73, {54*1280}
s_mul_i32 s75, s72, 640
s_add_u32 s74, s74, s75
s_mov_b32 s76, 1639''')
    ZROW=36*1024
    a.I(f'''v_mov_b32 v32, 0
v_mov_b32 v33, 0
v_mov_b32 v34, 0
v_mov_b32 v35, 0''')
    a.LG(f'ds_write_b128 {vL16}, v[32:35] offset:{ZROW}')
    for j in range(9):
        a.I(f'''v_add_u32 v22, {256*j}, v0
v_mul_u32_u24 v23, s76, v22
v_lshrrev_b32 v23, 16, v23
v_mul_u32_u24 v23, 640, v23
v_lshl_add_u32 v22, v22, 4, v23
s_lshl_b32 s75, {sW}, 10
s_add_u32 m0, s75, {4096*j}''')
        a.VM(f'buffer_load_dwordx4 v22, {TA}, s74 offen lds')
    a.I(f'''v_lshl_add_u32 v24, {vG}, 3, v20
v_mul_u32_u24 v24, 640, v24
v_lshl_add_u32 v25, {vG}, 2, v20
v_add_u32 v25, 32, v25
v_mul_u32_u24 v25, 640, v25
v_lshlrev_b32 v26, 3, {vG}
v_mov_b32 v27, 0x30323430
v_mov_b32 v28, 0x2c002e2c
v_lshrrev_b32 v27, v26, v27
v_lshrrev_b32 v28, v26, v28
v_and_b32 v27, 0xff, v27
v_and_b32 v28, 0xff, v28
v_cmp_gt_u32 vcc, 2, v20
v_cndmask_b32 v26, v28, v27, vcc
v_and_b32 v27, 1, v20
v_add_u32 v27, v26, v27
v_mul_u32_u24 v27, 640, v27
v_cmp_eq_u32 vcc, 0, v26
v_mov_b32 v28, {ZROW}
v_cndmask_b32 v26, v27, v28, vcc
s_mul_i32 s75, {sW}, 160
v_lshl_add_u32 v27, v21, 3, s75
v_add_u32 v24, v24, v27
v_add_u32 v25, v25, v27
v_add_u32 v26, v26, v27''')
    a.I(f's_mul_i32 s75, s73, 7')
    for rd,dst in ((0,28),(1,29)):
        a.I(f'''v_add_u32 v30, s75, {vG}
v_add_u32 v30, {4*rd}, v30
v_lshrrev_b32 v31, 2, v30
v_mul_u32_u24 v31, 5120, v31
v_and_b32 v30, 3, v30
v_lshl_add_u32 v31, v30, 8, v31
v_lshl_add_u32 v{dst}, {vLo}, 4, v31''')
    a.I(f'''s_lshl_b32 s74, s72, 2
s_add_u32 s74, s74, {sW}
s_mul_i32 s74, s74, 286720
s_add_u32 s74, s74, {W2F}
s_add_u32 s75, s74, 4096''')
    a.wait(vm='all',lg='all'); a.I('s_barrier')
    for rd in range(2):
        for t in range(5):
            b=32+20*rd+4*t
            if rd==0:
                a.LG(f'ds_read_b64_tr_b16 {R(b,2)}, v24 offset:{32*t}')
                a.LG(f'ds_read_b64_tr_b16 {R(b+2,2)}, v24 offset:{32*t+4*640}',f'z{rd}{t}')
            else:
                a.LG(f'ds_read_b64_tr_b16 {R(b,2)}, v25 offset:{32*t}')
                a.LG(f'ds_read_b64_tr_b16 {R(b+2,2)}, v26 offset:{32*t}',f'z{rd}{t}')
    for rd in range(2):
        if rd==1:
            a.wait(lg='all')
            a.I('s_mov_b32 exec_hi, 0xffff')
        for t in range(5):
            b=32+20*rd+4*t
            a.wait(lg=f'z{rd}{t}')
            a.VM(f'buffer_store_dwordx4 {R(b)}, v{28+rd}, {WS}, s{74+(t>>2)} offen offset:{(t&3)*1024} sc1')
    a.I('s_mov_b64 exec, -1')
    a.L('L_h3done')
    wg_signal_byte('s71',7)
    stamp('h: w2 done')

W2X=232
def w2reg(i):
    return R(4*i,4,'a') if i<64 else R(W2X+4*(i-64))
def load_weights():
    a.L('L_join')
    a.vmq=['x']; a.lgq=[]
    a.C('wait for everything in front (init done everywhere, W1F, W2F)')
    range_mask(20,40,24,'0x04040404',21)
    a.I('v_or_b32 v20, 0x01010101, v20')
    poll(DBG,vL4,'0','v20',21)
    a.I('s_barrier')
    stamp('front flags')
    a.I(f'''s_mul_i32 s72, {sFS}, 143360
s_add_u32 s72, s72, {W1F}
s_mul_i32 s73, {sW}, 7168
s_add_u32 s72, s72, s73
s_sub_u32 s73, {w1off(0)}, s73''')
    for j in range(5):
        for half in range(2):
            a.I(f's_add_u32 m0, s73, {half*4096}\ns_add_u32 s74, s72, {half*4096}')
            for t in range(4 if half==0 else 3):
                a.VM(f'buffer_load_dwordx4 {vL16}, {WS}, s74 offen offset:{t*1024} sc1 lds','w1')
        a.I(f's_add_u32 s72, s72, {4*7168}\ns_sub_u32 s73, s73, {4*7168}')
    a.I(f'''s_mul_i32 s72, {sCS}, 286720
s_mul_i32 s73, {sW}, 71680
s_add_u32 s72, s72, s73
s_add_u32 s72, s72, {W2F}''')
    for i in range(70):
        if i==28: a.wait(vm='w1')
        a.VM(f'buffer_load_dwordx4 {w2reg(i)}, {vL16}, {WS}, s72 offen offset:{(i&3)*1024} sc1','w2')
        if i&3==3: a.I('s_add_u32 s72, s72, 4096')
    a.I('s_barrier')
    a.I(f'''v_add_u32 v6, {0}, {vL16}
v_add_u32 v7, {8*7168}, {vL16}
v_add_u32 v8, {16*7168}, {vL16}''')
    stamp('w1 loaded')
    a.I(f's_cmp_lg_u32 {sRB}, 3\ns_cbranch_scc1 L_nocs')
    a.I(f'''s_mul_i32 s72, {sW}, {5*7168}
v_add_u32 v20, s72, {vL16}
v_mov_b32 v24, 0x3f803f80
v_mov_b32 v25, 0x3f803f80
v_mov_b32 v26, 0x3f803f80
v_mov_b32 v27, 0x3f803f80''')
    for k in range(5):
        for t in range(7): a.LG(f'ds_read_b128 {R(64+4*t)}, v20 offset:{k*7168+t*1024}',f'c{t}')
        for t in range(7):
            a.wait(lg=f'c{t}')
            a.I(f'v_mfma_f32_16x16x32_bf16 {R(32+4*t)}, {R(64+4*t)}, v[24:27], {R(32+4*t) if k else "0"}')
    a.I(f'''s_lshl_b32 s72, {sW}, 9
s_add_u32 s72, s72, {RED}
v_lshl_add_u32 v21, {vG}, 4, s72
s_mov_b32 exec_lo, 0x00010001
s_mov_b32 exec_hi, 0x00010001''')
    for t in range(7): a.LG(f'ds_write_b128 v21, {R(32+4*t)} offset:{64*t}')
    a.I('s_mov_b64 exec, -1')
    a.wait(lg='all'); a.I('s_barrier')
    a.I(f'v_lshlrev_b32 v21, 3, {vL}\nv_add_u32 v22, {RED}, v21')
    for w in range(4): a.LG(f'ds_read_b64 {R(32+2*w,2)}, v22 offset:{512*w}')
    a.wait(lg='all')
    a.I(f'''v_pk_add_f32 v[32:33], v[32:33], v[34:35]
v_pk_add_f32 v[36:37], v[36:37], v[38:39]
v_pk_add_f32 v[32:33], v[32:33], v[36:37]
s_lshl_b32 s72, {sFS}, 9
s_add_u32 s72, s72, {CSUM}''')
    a.VM(f'buffer_store_dwordx2 v[32:33], v21, {WS}, s72 offen sc1')
    a.I(f's_lshl_b32 s72, {sFS}, 2\ns_add_u32 s72, s72, {FL_CS}')
    wg_signal_word('s72')
    a.L('L_nocs')
    a.vmq=['x']
    a.I(f'''v_lshrrev_b32 v9, 2, {vLo}
v_lshl_add_u32 v9, v9, 4, {vLo}
v_lshlrev_b32 v9, 2, v9
v_lshlrev_b32 v10, 2, {vLo}
v_add_u32 v10, 64, v10
v_and_b32 v20, 3, {vL}
v_cmp_eq_u32 s[80:81], 1, v20
v_cmp_eq_u32 s[82:83], 2, v20
v_cmp_eq_u32 s[84:85], 3, v20
v_cmp_gt_u32 s[86:87], 40, {vL}''')
    a.I(f'''s_mul_i32 s72, {sW}, 5120
s_add_u32 s72, s72, {RED}
v_lshrrev_b32 v21, 1, {vG}
v_lshl_add_u32 v21, v21, 2, {vLo}
v_and_b32 v22, 15, v21
v_lshlrev_b32 v22, 4, v22
v_lshl_add_u32 v22, {vG}, 8, v22
v_add_u32 v11, s72, v22
v_add_u32 v21, 8, v21
v_and_b32 v22, 15, v21
v_lshlrev_b32 v22, 4, v22
v_lshl_add_u32 v22, {vG}, 8, v22
v_add_u32 v12, s72, v22''')
    a.I(f'''v_lshrrev_b32 v21, 2, {vL}
v_min_u32 v21, 9, v21
v_add_u32 v22, {sW}, v21
v_lshl_add_u32 v22, v22, 2, v20
v_and_b32 v22, 15, v22
v_lshlrev_b32 v22, 4, v22
v_lshl_add_u32 v22, v21, 9, v22
v_add_u32 v13, {RED}, v22''')

def w1addr(ks,t):
    o=w1off(ks)+t*1024
    b=o//(8*7168)
    return f'v{6+b}', o-b*8*7168

def g1(layer, hf):
    a.C(f'G1 layer {layer} half {hf}')
    XSRC = X1F if layer==0 else X3F
    HDST = H1F if layer==0 else H2F
    ACC=32; DG=88; WF=96; XR=124; NX=24; CSB=124; T0=96
    if layer==0:
        range_mask(220,0,40,1,221)
        a.I(f's_mov_b32 s72, {FL_XA if hf==0 else FL_XB}')
        poll(WS,vL16,'s72','v220',224,wide=True)
    else:
        range_mask(220,0,32,1,221)
        a.I(f'''s_lshl_b32 s72, {sRB}, 2
s_add_u32 s72, s72, {sW}
s_lshl_b32 s72, s72, 7
s_add_u32 s72, s72, {FL_X3+hf*4096}''')
        poll(WS,vL4,'s72','v220',221)
    stamp(f'g1 {layer}{hf} in')
    a.I(f'''s_lshl_b32 s75, {sRB}, 2
s_add_u32 s75, s75, {sW}
s_mul_i32 s72, s75, {2*20480}
s_add_u32 s72, s72, {XSRC+hf*64*20480}
s_add_u32 s73, s72, 20480''')
    def xload(ks):
        for tt in range(2):
            sl=(2*ks+tt)%NX
            a.VM(f'buffer_load_dwordx4 {R(XR+4*sl)}, {vL16}, {WS}, s{72+tt} offen offset:{(ks&3)*1024} sc1',f'x{ks}')
        if ks&3==3: a.I('s_add_u32 s72, s72, 4096\ns_add_u32 s73, s73, 4096')
    def wread(ks,t):
        v,o=w1addr(ks,t); a.LG(f'ds_read_b128 {R(WF+4*t)}, {v} offset:{o}',f'w{ks}_{t}')
    PF=NX//2
    for ks in range(PF): xload(ks)
    for t in range(7): wread(0,t)
    for ks in range(20):
        x0=XR+4*((2*ks)%NX); x1=XR+4*((2*ks+1)%NX)
        a.wait(vm=f'x{ks}')
        for tt,xx in ((0,x0),(1,x1)):
            a.I(f'v_mfma_f32_16x16x32_bf16 {R(DG+4*tt)}, {R(xx)}, {R(xx)}, {R(DG+4*tt) if ks else "0"}')
        for t in range(7):
            a.wait(lg=f'w{ks}_{t}')
            for tt,xx in ((0,x0),(1,x1)):
                ac=ACC+28*tt+4*t
                a.I(f'v_mfma_f32_16x16x32_bf16 {R(ac)}, {R(WF+4*t)}, {R(xx)}, {R(ac) if ks else "0"}')
            if ks<19: wread(ks+1,t)
        if ks+PF<20: xload(ks+PF)
    stamp(f'g1 {layer}{hf} loop')
    if layer==0 and hf==0:
        a.I(f'v_mov_b32 v220, 1\nv_mov_b32 v222, 0\ns_lshl_b32 s72, {sFS}, 2\ns_add_u32 s72, s72, {FL_CS}')
        poll(WS,'v222','s72','v220',221)
    a.I(f's_lshl_b32 s72, {sFS}, 9\ns_add_u32 s72, s72, {CSUM}\nv_lshlrev_b32 v220, 4, {vG}')
    for t in range(7):
        a.VM(f'buffer_load_dwordx4 {R(CSB+4*t)}, v220, {WS}, s72 offen offset:{64*t} sc1','cs')
    a.I(f'''s_mul_i32 s72, s75, {2*57344}
s_mul_i32 s73, {sFS}, 1792
s_add_u32 s72, s72, s73
s_add_u32 s72, s72, {HDST+hf*64*57344}''')
    for tt in range(2):
        d=DG+4*tt; m=T0+8*tt
        a.I(f'''v_cndmask_b32 v{d}, v{d}, v{d+1}, s[80:81]
v_cndmask_b32 v{d}, v{d}, v{d+2}, s[82:83]
v_cndmask_b32 v{d}, v{d}, v{d+3}, s[84:85]''')
        a.LG(f'ds_bpermute_b32 v{m+1}, v9, v{d}')
        a.LG(f'ds_bpermute_b32 v{m}, v10, v{ACC+28*tt+24+2}',f'bp{tt}')
    for tt in range(2):
        m=T0+8*tt; A=ACC+28*tt
        a.wait(lg=f'bp{tt}')
        a.I(f'''v_mul_f32 v{m}, 0x3acccccd, v{m}
v_mul_f32 v{m+1}, 0x3acccccd, v{m+1}
v_fma_f32 v{m+1}, -v{m}, v{m}, v{m+1}
v_max_f32 v{m+1}, 0, v{m+1}''')
        ln_scalars(m,m+1)
        a.I(f'v_mul_f32 v{m+1}, v{m+1}, v{m+1}')
        a.wait(vm='cs')
        for i in range(14):
            a.I(f'v_pk_fma_f32 {R(A+2*i,2)}, {R(CSB+2*i,2)}, {R(m,2)}, {R(A+2*i,2)} op_sel_hi:[1,0,1] neg_lo:[0,1,0] neg_hi:[0,1,0]')
        a.I(f'v_permlane32_swap_b32 v{A+24}, v{A+26}\nv_permlane32_swap_b32 v{A+25}, v{A+27}')
        for i in range(6):
            a.I(f'v_pk_mul_f32 {R(A+2*i,2)}, {R(A+2*i,2)}, {R(A+12+2*i,2)}')
        a.I(f'v_pk_mul_f32 {R(A+12,2)}, {R(A+24,2)}, {R(A+26,2)}')
        for i in range(7):
            a.I(f'v_pk_mul_f32 {R(A+2*i,2)}, {R(A+2*i,2)}, {R(m,2)} op_sel:[0,1] op_sel_hi:[1,1]')
        O=A+16
        for i in range(7): a.I(f'v_cvt_pk_bf16_f32 v{O+i}, v{A+2*i}, v{A+2*i+1}')
        for i in range(3): a.I(f'v_mov_b32 v{A+24+i}, v{O+4+i}')
        a.VM(f'buffer_store_dwordx4 {R(O)}, {vL16}, {WS}, s72 offen sc1','hst')
        a.I(f'''v_permlane16_swap_b32 v{A+24}, v{A+25}
v_permlane16_swap_b32 v{A+26}, v{O+7}
v_permlane32_swap_b32 v{A+25}, v{O+7}
s_mov_b32 exec_hi, 0xffff''')
        a.VM(f'buffer_store_dwordx4 {R(O+4)}, {vL16}, {WS}, s72 offen offset:1024 sc1','hst')
        a.I(f's_mov_b64 exec, -1\ns_add_u32 s72, s72, 57344')
    a.wait(vm='all')
    a.I(f's_add_u32 s72, s66, {(layer*2+hf)*4096}')
    wave_signal_word('s72')
    stamp(f'g1 {layer}{hf} done')

X3K=16
def g2(layer, hf):
    a.C(f'G2 layer {layer} half {hf}')
    HSRC = H1F if layer==0 else H2F
    HR=32; ACC=144; PB=184; XR=216; YR=224
    range_mask(20 if False else 144,0,8,1,145)
    a.I(f'''s_lshl_b32 s72, {sTB}, 7
s_lshl_b32 s73, {sW}, 5
s_add_u32 s72, s72, s73
s_add_u32 s72, s72, {FL_H+(layer*2+hf)*4096}''')
    poll(WS,vL4,'s72','v144',145)
    stamp(f'g2 {layer}{hf} in')
    a.I(f'''s_mul_i32 s72, {sTB}, {2*57344}
s_mul_i32 s73, {sW}, {14*1024}
s_add_u32 s72, s72, s73
s_add_u32 s72, s72, {HSRC+hf*64*57344}''')
    for tt in range(2):
        for k in range(14):
            a.VM(f'buffer_load_dwordx4 {R(HR+56*tt+4*k)}, {vL16}, {WS}, s72 offen offset:{(k&3)*1024} sc1',f'h{tt}_{k}')
            if k&3==3: a.I('s_add_u32 s72, s72, 4096')
        a.I(f's_add_u32 s72, s72, {57344-3*4096}')
    vXo,vYo,vOo,vSo,vSi=PB+24,PB+25,PB+26,PB+27,PB+28
    a.I(f'''v_lshrrev_b32 v{PB}, 2, {vL}
v_min_u32 v{PB}, 9, v{PB}
v_and_b32 v{PB+1}, 3, {vL}
v_lshlrev_b32 v{vXo}, 8, v{PB}
v_lshl_add_u32 v{vYo}, v{PB+1}, 3, v{vXo}
v_lshl_add_u32 v{vXo}, v{PB+1}, 4, v{vXo}
v_mul_u32_u24 v{vOo}, 1280, v{PB+1}
v_lshl_add_u32 v{vOo}, v{PB}, 4, v{vOo}
v_lshlrev_b32 v{vSo}, 7, v{PB+1}
v_bfe_u32 v{PB}, {vL}, 2, 3
v_lshl_add_u32 v{vSi}, v{PB}, 4, v{vSo}
s_mul_i32 s73, {sTB}, {2*20480}
s_mul_i32 s74, {sCS}, 2560
s_add_u32 s73, s73, s74
s_add_u32 s73, s73, {hf*64*20480}
s_lshl_b32 s74, {sW}, 5
s_add_u32 s75, s73, s74
s_add_u32 s73, s75, s74''')
    if layer==0:
        for tt in range(2):
            a.I(f's_add_u32 s74, s73, {X1F+tt*20480}\ns_add_u32 s76, s75, {YP+tt*20480}')
            a.VM(f'buffer_load_dwordx4 {R(XR+4*tt)}, v{vXo}, {WS}, s74 offen sc1',f'xr{tt}')
            a.VM(f'buffer_load_dwordx2 {R(YR+4*tt,2)}, v{vYo}, {WS}, s76 offen sc1',f'xr{tt}')
            a.VM(f'buffer_load_dwordx2 {R(YR+4*tt+2,2)}, v{vYo}, {WS}, s76 offen offset:128 sc1',f'xr{tt}')
    for tt in range(2):
        for k in range(14):
            a.wait(vm=f'h{tt}_{k}')
            for t in range(5):
                ac=ACC+20*tt+4*t
                a.I(f'v_mfma_f32_16x16x32_bf16 {R(ac)}, {w2reg(5*k+t)}, {R(HR+56*tt+4*k)}, {R(ac) if k else "0"}')
    stamp(f'g2 {layer}{hf} loop')
    X2=HR+64
    for tt in range(2):
        a.I('s_barrier')
        for t in range(5):
            a.LG(f'ds_write_b128 v{11+(t&1)}, {R(ACC+20*tt+4*t)} offset:{t*1024}')
        a.wait(lg='all'); a.I('s_barrier')
        P=HR
        for w in range(4):
            for e in range(2):
                a.LG(f'ds_read_b128 {R(P+8*w+4*e)}, v13 offset:{w*5120+e*256}',f'p{w}')
        a.wait(lg='p1')
        for i in range(4): a.I(f'v_pk_add_f32 {R(P+2*i,2)}, {R(P+2*i,2)}, {R(P+8+2*i,2)}')
        a.wait(lg='p3')
        for i in range(4): a.I(f'v_pk_add_f32 {R(P+16+2*i,2)}, {R(P+16+2*i,2)}, {R(P+24+2*i,2)}')
        for i in range(4): a.I(f'v_pk_add_f32 {R(P+2*i,2)}, {R(P+2*i,2)}, {R(P+16+2*i,2)}')
        for i in range(4): a.I(f'v_cvt_pk_bf16_f32 v{P+8+i}, v{P+2*i}, v{P+2*i+1}')
        for i in range(4): unpack(P+2*i,P+2*i+1,P+8+i)
        res = XR+4*tt if layer==0 else X3K+4*(2*hf+tt)
        if layer==0: a.wait(vm=f'xr{tt}')
        for i in range(4): unpack(P+16+2*i,P+16+2*i+1,res+i)
        for i in range(4): a.I(f'v_pk_add_f32 {R(P+2*i,2)}, {R(P+2*i,2)}, {R(P+16+2*i,2)}')
        for i in range(4): a.I(f'v_cvt_pk_bf16_f32 v{P+8+i}, v{P+2*i}, v{P+2*i+1}')
        if layer==1:
            a.I(f'''s_lshl_b32 s74, {sTB}, 3
s_add_u32 s74, s74, {sW}
s_mul_i32 s74, s74, {4*1280}
s_mul_i32 s76, {sCS}, 160
s_add_u32 s74, s74, s76
s_add_u32 s74, s74, {(1024*hf+16*tt)*1280}
s_mov_b64 exec, s[86:87]''')
            a.VM(f'buffer_store_dwordx4 {R(P+8)}, v{vOo}, {OUT}, s74 offen')
            a.I('s_mov_b64 exec, -1\ns_nop 1')
        else:
            x2=X2+8*tt
            for i in range(4): unpack(x2+2*i,x2+2*i+1,P+8+i)
            S=P+16
            a.I(f'''v_pk_add_f32 {R(S,2)}, {R(x2,2)}, {R(x2+2,2)}
v_pk_mul_f32 {R(S+2,2)}, {R(x2,2)}, {R(x2,2)}
v_pk_add_f32 {R(S,2)}, {R(S,2)}, {R(x2+4,2)}
v_pk_fma_f32 {R(S+2,2)}, {R(x2+2,2)}, {R(x2+2,2)}, {R(S+2,2)}
v_pk_add_f32 {R(S,2)}, {R(S,2)}, {R(x2+6,2)}
v_pk_fma_f32 {R(S+2,2)}, {R(x2+4,2)}, {R(x2+4,2)}, {R(S+2,2)}
v_pk_fma_f32 {R(S+2,2)}, {R(x2+6,2)}, {R(x2+6,2)}, {R(S+2,2)}
v_add_f32 v{S}, v{S}, v{S+1}
v_add_f32 v{S+1}, v{S+2}, v{S+3}
v_cndmask_b32 v{S}, 0, v{S}, s[86:87]
v_cndmask_b32 v{S+1}, 0, v{S+1}, s[86:87]''')
            red4(S,S+4)
            a.I(f'''v_mov_b32 v{S+2}, 1
v_mov_b32 v{S+3}, 1
s_lshl_b32 s74, {sCS}, 4
s_add_u32 s74, s74, s69
s_add_u32 s74, s74, {(1024*hf+16*tt)*128}
s_mov_b64 exec, 0xf''')
            a.VM(f'buffer_store_dwordx4 {R(S)}, v{vSo}, {WS}, s74 offen sc1')
            a.I('s_mov_b64 exec, -1\ns_nop 1')
    stamp(f'g2 {layer}{hf} red')
    if layer==0:
        for tt in range(2):
            x2=X2+8*tt; S=HR; Yf=HR+8; T=HR+16
            L=a.newlabel('Lst'); Ld=a.newlabel('Lstd')
            a.I(f's_add_u32 s74, s69, {(1024*hf+16*tt)*128}\ns_mov_b32 {sSPIN}, 0')
            a.L(L)
            a.I(f'''buffer_load_dwordx4 {R(S)}, v{vSi}, {WS}, s74 offen sc1
s_waitcnt vmcnt(0)
v_cmp_ne_u32 vcc, 1, v{S+3}
s_cbranch_vccz {Ld}
s_sleep 1
s_add_u32 {sSPIN}, {sSPIN}, 1
s_cmp_lt_u32 {sSPIN}, {SPIN_LIMIT}
s_cbranch_scc1 {L}''')
            a.L(Ld); a.vmq=[]
            for v in (S,S+1):
                for k in (4,8):
                    a.I(f'v_add_f32_dpp v{v}, v{v}, v{v} row_ror:{k} row_mask:0xf bank_mask:0xf')
            a.I(f'''v_mov_b32 v{S+4}, v{S}
v_mov_b32 v{S+5}, v{S+1}
v_permlane16_swap_b32 v{S}, v{S+4}
v_permlane16_swap_b32 v{S+1}, v{S+5}
v_add_f32 v{S}, v{S}, v{S+4}
v_add_f32 v{S+1}, v{S+1}, v{S+5}
v_mul_f32 v{S}, 0x3acccccd, v{S}
v_mul_f32 v{S+1}, 0x3acccccd, v{S+1}
v_fma_f32 v{S+1}, -v{S}, v{S}, v{S+1}
v_max_f32 v{S+1}, 0, v{S+1}''')
            ln_scalars(S,S+1)
            for i in range(4): unpack(Yf+2*i,Yf+2*i+1,YR+4*tt+i)
            for i in range(4): a.I(f'v_pk_add_f32 {R(T+2*i,2)}, {R(x2+2*i,2)}, {R(S,2)} op_sel_hi:[1,0] neg_lo:[0,1] neg_hi:[0,1]')
            for i in range(4): a.I(f'v_pk_mul_f32 {R(T+2*i,2)}, {R(T+2*i,2)}, {R(S,2)} op_sel:[0,1] op_sel_hi:[1,1]')
            for i in range(4): a.I(f'v_pk_fma_f32 {R(T+2*i,2)}, {R(T+2*i,2)}, {R(Yf+2*i,2)}, {R(x2+2*i,2)}')
            K=X3K+4*(2*hf+tt)
            for i in range(4): a.I(f'v_cvt_pk_bf16_f32 v{K+i}, v{T+2*i}, v{T+2*i+1}')
            a.I(f's_add_u32 s74, s73, {X3F+tt*20480}\ns_mov_b64 exec, s[86:87]')
            a.VM(f'buffer_store_dwordx4 {R(K)}, v{vXo}, {WS}, s74 offen sc1')
            a.I('s_mov_b64 exec, -1')
        a.wait(vm='all')
        a.I(f's_add_u32 s72, s67, {hf*4096}')
        wave_signal_word('s72')
        stamp(f'g2 {layer}{hf} done')

def red4(S,T):
    for v in (S,S+1):
        for k in (4,8):
            a.I(f'v_add_f32_dpp v{v}, v{v}, v{v} row_ror:{k} row_mask:0xf bank_mask:0xf')
    for sw in ('16','32'):
        a.I(f'''v_mov_b32 v{T}, v{S}
v_mov_b32 v{T+1}, v{S+1}
v_permlane{sw}_swap_b32 v{S}, v{T}
v_permlane{sw}_swap_b32 v{S+1}, v{T+1}
v_add_f32 v{S}, v{S}, v{T}
v_add_f32 v{S+1}, v{S+1}, v{T+1}''')

def main():
    prologue()
    p0(); conv()
    n_conv=nstamp[0]
    nstamp[0]=1
    helper()
    nstamp[0]=n_conv
    load_weights()
    done=False
    for layer in range(2):
        for fn,hf in ((g1,0),(g1,1),(g2,0),(g2,1)):
            if STOP and STOP==f'{fn.__name__}{layer}{hf}': done=True
            if not done: fn(layer,hf)
    if STAMPS:
        stamp('end')
        a.I(f'''s_lshl_b32 s72, s2, 10
s_lshl_b32 s73, {sW}, 8
s_add_u32 s72, s72, s73
s_add_u32 s72, s72, {STMP}
buffer_store_dword {vST}, {vL4}, {WS}, s72 offen''')
    a.L('L_end')
    a.I('s_endpgm')
    body=a.finalize()
    hdr=open(os.path.join(os.path.dirname(__file__),'..','cdna_kernels',NAME+'.s.ref')).read().split('; Override launch')[0]
    txt=hdr+f'''; @launch grid=(256,1,1) block=(256,1,1) lds=163840
.amdgcn_target "amdgcn-amd-amdhsa--gfx950"
.text
.globl {NAME}_kernel
.p2align 8
.type {NAME}_kernel,@function
{NAME}_kernel:
{body}.section .rodata,"a"
.p2align 6
.amdhsa_kernel {NAME}_kernel
  .amdhsa_next_free_vgpr 512
  .amdhsa_next_free_sgpr 102
  .amdhsa_accum_offset 256
  .amdhsa_group_segment_fixed_size 0
  .amdhsa_kernarg_size 104
  .amdhsa_user_sgpr_count 2
  .amdhsa_user_sgpr_kernarg_segment_ptr 1
  .amdhsa_system_sgpr_workgroup_id_x 1
.end_amdhsa_kernel
'''
    out=sys.argv[1] if len(sys.argv)>1 else os.path.join(os.path.dirname(__file__),'..','cdna_kernels',NAME+'.s')
    open(out,'w').write(txt)
    if STAMPS: open(out+'.stamps','w').write('\n'.join(stamp_names))
    print('written',out,'nops',a.nnop,'lines',txt.count('\n'))
main()
```

```python
import sys, os
sys.path.insert(0, os.path.dirname(__file__))
from asmlib import Asm
NAME='interleave_layers__ssm_conv_h3__glu_gated_bilinear__prompt'
STAMPS = int(os.environ.get('STAMPS','0'))
STOP = os.environ.get('STOP','')
SPIN_LIMIT = 100000

KVF=0x0000000; X0T=0x0300000; ST0=0x0600000; CSUM=0x0610000; FLG=0x0620000; ST2=0x0640000
W1F=0x0700000; W2F=0x0C00000; X1F=0x0F00000; YP=0x1200000; X3F=0x1500000; H1F=0x1800000; H2F=0x2000000
STMP=0x2800000
WS_BYTES=268435456
FL_XA=FLG; FL_XB=FLG+0x400; FL_CS=FLG+0x800; FL_H=FLG+0x1000; FL_X3=FLG+0x6000
FL_KV=FLG+0x9000; FL_X0=FLG+0x9800; FL_W1=FLG+0xa000; FL_Q=FLG+0xa400; FL_W2=FLG+0xa800; EPOCH=FLG+0xc000
sTAG='s97'; vTAG='v14'
EPL=4160; CW=21248; UOFF=16640; RED=143360; YSTR=2112
def w1off(ks): return (19-ks)*7168
WS='s[36:39]'; DBG='s[40:43]'; OUT='s[44:47]'; TA='s[48:51]'; TB='s[52:55]'; TC='s[56:59]'
sX='s4'; sI='s5'; sW='s6'; sCG='s34'; sRB='s60'; sFS='s61'; sTB='s62'; sCS='s63'; sSPIN='s96'
vL='v1'; vL16='v2'; vLo='v3'; vG='v4'; vL4='v5'; vST='v15'

a=Asm()
def R(b,n=4,k='v'): return f'{k}[{b}:{b+n-1}]' if n>1 else f'{k}{b}'
def srd(dst, ptr, nbytes):
    d=int(dst[2:dst.index(':')])
    a.I(f's_mov_b32 s{d}, s{ptr}\ns_mov_b32 s{d+1}, s{ptr+1}\ns_mov_b32 s{d+2}, {nbytes}\ns_mov_b32 s{d+3}, 0x20000')
nstamp=[0]
def stamp(name):
    if not STAMPS: return
    k=nstamp[0]; nstamp[0]+=1
    a.C(f'stamp {k}: {name}')
    a.I(f's_memtime s[98:99]'); a.I('s_waitcnt lgkmcnt(0)'); a.lgq=[]
    a.I(f'v_writelane_b32 {vST}, s98, {k}')
    stamp_names.append(name)
stamp_names=[]

def poll(voff, soff, nlanes, vt, wide=False, wg=False, sleep=1):
    L=a.newlabel('Lpoll'); Ld=a.newlabel('Lpd')
    if wg: a.I(f's_cmp_lg_u32 {sW}, 0\ns_cbranch_scc1 {Ld}')
    a.I(f's_mov_b32 {sSPIN}, 0')
    m=(1<<nlanes)-1
    a.I(f's_mov_b32 exec_lo, {m&0xffffffff:#x}\ns_mov_b32 exec_hi, {m>>32:#x}')
    a.L(L)
    if wide:
        a.I(f'buffer_load_dwordx4 {R(vt)}, {voff}, {WS}, {soff} offen sc1')
        a.I('s_waitcnt vmcnt(0)')
        a.I(f'v_xor_b32 v{vt}, v{vt}, v{vt+1}\nv_xor_b32 v{vt+2}, v{vt+2}, v{vt+3}\nv_xor_b32 v{vt+1}, {vTAG}, v{vt+1}\nv_xor_b32 v{vt+3}, {vTAG}, v{vt+3}')
        a.I(f'v_or3_b32 v{vt}, v{vt}, v{vt+1}, v{vt+2}\nv_or_b32 v{vt}, v{vt}, v{vt+3}\nv_cmp_ne_u32 vcc, 0, v{vt}')
    else:
        a.I(f'buffer_load_dword v{vt}, {voff}, {WS}, {soff} offen sc1')
        a.I('s_waitcnt vmcnt(0)')
        a.I(f'v_cmp_ne_u32 vcc, v{vt}, {vTAG}')
    a.I(f's_cbranch_vccz {Ld}')
    a.I(f's_sleep {sleep}\ns_add_u32 {sSPIN}, {sSPIN}, 1\ns_cmp_lt_u32 {sSPIN}, {SPIN_LIMIT}\ns_cbranch_scc1 {L}')
    a.L(Ld)
    a.I('s_mov_b64 exec, -1')
    if wg: a.I('s_barrier')
    else: a.vmq=[]

def wg_signal(soff, tags='all'):
    a.wait(vm=tags)
    a.I('s_barrier')
    Ls=a.newlabel('Lsig')
    a.I(f's_cmp_lg_u32 {sW}, 0\ns_cbranch_scc1 {Ls}')
    a.I(f's_mov_b64 exec, 1\nbuffer_store_dword {vTAG}, off, {WS}, {soff} sc1\ns_mov_b64 exec, -1')
    a.L(Ls)
def wave_signal(soff):
    a.I(f's_mov_b64 exec, 1')
    a.VM(f'buffer_store_dword {vTAG}, off, {WS}, {soff} sc1','sig')
    a.I('s_mov_b64 exec, -1')

def bf16round(vd, vs):
    a.I(f'v_cvt_pk_bf16_f32 v{vd}, v{vs}, v{vs}\nv_lshlrev_b32 v{vd}, 16, v{vd}')
def ln_scalars(vm, vvar):
    bf16round(vm,vm); bf16round(vvar,vvar)
    a.I(f'v_add_f32 v{vvar}, 0x3727c5ac, v{vvar}')
    bf16round(vvar,vvar)
    a.I(f'v_sqrt_f32 v{vvar}, v{vvar}')
    bf16round(vvar,vvar)
    a.I(f'v_rcp_f32 v{vvar}, v{vvar}')
def unpack(dlo, dhi, src):
    a.I(f'v_lshlrev_b32 v{dlo}, 16, v{src}\nv_and_b32 v{dhi}, 0xffff0000, v{src}')

def prologue():
    a.I(f'''s_cmp_ge_u32 s2, 256
s_cbranch_scc1 L_end
s_load_dwordx16 s[8:23], s[0:1], 0
s_load_dwordx8 s[24:31], s[0:1], 64
s_load_dwordx2 s[32:33], s[0:1], 96
s_getpc_b64 s[64:65]''')
    a.L('L_pc')
    a.I(f'''v_and_b32 {vL}, 63, v0
v_lshrrev_b32 v6, 6, v0
v_lshlrev_b32 v7, 7, v0
v_readfirstlane_b32 {sW}, v6
v_min_u32 v8, L_end-L_pc, v7
v_add_u32 v7, 0x8000, v7
v_min_u32 v7, L_end-L_pc, v7''')
    a.VM('global_load_dword v8, v8, s[64:65]')
    a.VM('global_load_dword v7, v7, s[64:65]')
    a.I(f'''v_lshlrev_b32 {vL16}, 4, {vL}
v_and_b32 {vLo}, 15, {vL}
v_lshrrev_b32 {vG}, 4, {vL}
v_lshlrev_b32 {vL4}, 2, {vL}
v_mov_b32 {vST}, 0
s_and_b32 {sX}, s2, 7
s_lshr_b32 {sI}, s2, 3
s_lshr_b32 s3, {sI}, 3
s_and_b32 {sCS}, {sI}, 7
s_and_b32 s7, {sX}, 1
s_lshl_b32 s7, s7, 2
s_add_u32 {sRB}, s7, s3
s_lshr_b32 s7, {sX}, 1
s_lshl_b32 s7, s7, 3
s_add_u32 {sFS}, s7, {sCS}
s_lshl_b32 s7, {sX}, 2
s_add_u32 {sTB}, s7, s3
s_mul_i32 {sCG}, {sX}, 20
s_add_u32 {sCG}, {sCG}, {sI}
s_waitcnt lgkmcnt(0)''')
    stamp('start')
    a.I(f's_mov_b32 s3, {EPOCH}\ns_load_dword {sTAG}, s[32:33], s3')
    srd(WS,32,WS_BYTES); srd(OUT,28,2048*640*2)
    a.I(f'''s_lshl_b32 s3, {sRB}, 2
s_add_u32 s3, s3, {sW}
s_lshl_b32 s3, s3, 7
s_lshl_b32 s7, {sFS}, 2
s_add_u32 s3, s3, s7
s_add_u32 s66, s3, {FL_H}
s_lshl_b32 s3, {sTB}, 7
s_lshl_b32 s7, {sCS}, 4
s_add_u32 s3, s3, s7
s_lshl_b32 s7, {sW}, 2
s_add_u32 s3, s3, s7
s_add_u32 s67, s3, {FL_X3}
s_lshl_b32 s3, {sCG}, 2
s_add_u32 s68, s3, {FL_XA}
s_lshl_b32 s3, {sTB}, 5
s_lshl_b32 s7, {sW}, 2
s_add_u32 s3, s3, s7
s_lshl_b32 s3, s3, 7
s_add_u32 s69, s3, {ST2}''')
    a.I(f's_cmp_ge_u32 {sI}, 20\ns_cbranch_scc1 L_helper')
def get_tag():
    a.I(f's_waitcnt lgkmcnt(0)\ns_add_u32 {sTAG}, {sTAG}, 0x9e3779b1\nv_mov_b32 {vTAG}, {sTAG}')
    a.lgq=[]

def p0():
    a.C('P0: kv and x0 transposition')
    srd(TA,10,2048*1280); srd(TB,12,2048*1280); srd(TC,14,640*8)
    a.I(f'''s_and_b32 s70, {sCG}, 15
s_lshr_b32 s71, {sCG}, 4
s_and_b32 s3, {sW}, 1
s_lshr_b32 s7, {sW}, 1
v_and_b32 v20, 7, {vL}
v_lshrrev_b32 v21, 3, {vL}
s_lshl_b32 s72, s7, 3
s_lshl_b32 s73, s71, 4
s_add_u32 s72, s72, s73
v_add_u32 v20, s72, v20
s_lshl_b32 s72, s3, 3
s_lshl_b32 s73, s70, 4
s_add_u32 s72, s72, s73
v_add_u32 v22, s72, v21''')
    a.I(f'''v_mul_u32_u24 v23, 10240, v22
v_lshl_add_u32 v23, v20, 3, v23
v_subrev_u32 v24, 3840, v23
v_lshlrev_b32 v25, 5, v20
s_movk_i32 s74, 5120''')
    KB=32
    VB=54
    SB=72
    a.VM(f'buffer_load_dwordx4 {R(SB)}, v25, {TC}, 0 offen','sh')
    a.VM(f'buffer_load_dwordx4 {R(SB+4)}, v25, {TC}, 0 offen offset:16','sh')
    for j in range(3):
        a.VM(f'buffer_load_dwordx2 {R(KB+2*j,2)}, v24, {TA}, 0 offen offset:{1280*j}',f'k{j}')
    for j in range(8):
        so = '0' if j<4 else 's74'
        a.VM(f'buffer_load_dwordx2 {R(KB+6+2*j,2)}, v23, {TA}, {so} offen offset:{1280*(j&3)}',f'k{j+3}')
        a.VM(f'buffer_load_dwordx2 {R(VB+2*j,2)}, v23, {TB}, {so} offen offset:{1280*(j&3)}',f'v{j}')
    srd(TC,16,640*4096)
    a.I(f'''s_lshl_b32 s75, {sCG}, 2
s_add_u32 s75, s75, {sW}
s_lshl_b32 s76, s75, 12''')
    EB=160
    for cgp in range(4):
        for m in range(4):
            a.VM(f'buffer_load_dwordx3 {R(EB+16*cgp+4*m,3)}, {vL16}, {TC}, s76 offen offset:{cgp*1024+4*m}',f'e{cgp}{m}')
    srd(TB,8,2048*1280)
    QB=224
    a.I(f'''s_lshl_b32 s72, s3, 6
s_lshl_b32 s73, s70, 7
s_add_u32 s72, s72, s73
v_lshl_add_u32 v26, v21, 1, s72
v_mul_u32_u24 v27, 1280, v26
v_lshl_add_u32 v27, v20, 3, v27
v_lshlrev_b32 v28, 14, v20
v_lshl_add_u32 v28, v26, 3, v28''')
    for j in range(4):
        a.I(f's_mov_b32 s72, {20480*j}')
        a.VM(f'buffer_load_dwordx2 {R(QB+4*j,2)}, v27, {TB}, s72 offen','q')
        a.VM(f'buffer_load_dwordx2 {R(QB+4*j+2,2)}, v27, {TB}, s72 offen offset:1280','q')
    a.I(f'''s_lshr_b32 s72, s75, 1
s_lshl_b32 s72, s72, 2
s_load_dword s77, s[18:19], s72''')
    WB=80
    a.wait(vm='sh')
    for c in range(4):
        unpack(WB+0*4+c, WB+1*4+c, SB+2*c)
        unpack(WB+2*4+c, WB+3*4+c, SB+2*c+1)
    KF=96
    def unk(j):
        a.wait(vm=f'k{j}')
        unpack(KF+4*j, KF+4*j+1, KB+2*j); unpack(KF+4*j+2, KF+4*j+3, KB+2*j+1)
    for j in range(3): unk(j)
    VF=140
    for s in range(8):
        unk(s+3)
        a.wait(vm=f'v{s}')
        unpack(VF, VF+1, VB+2*s); unpack(VF+2, VF+3, VB+2*s+1)
        for h in range(2):
            d=KF+4*s+2*h
            a.I(f'v_pk_mul_f32 {R(d,2)}, {R(d,2)}, {R(WB+12+2*h,2)}')
        for t,wj in ((1,2),(2,1),(3,0)):
            for h in range(2):
                d=KF+4*s+2*h
                a.I(f'v_pk_fma_f32 {R(d,2)}, {R(KF+4*(s+t)+2*h,2)}, {R(WB+4*wj+2*h,2)}, {R(d,2)}')
        for h in range(2):
            d=KF+4*s+2*h
            a.I(f'v_pk_mul_f32 {R(d,2)}, {R(d,2)}, {R(VF+2*h,2)}')
    a.I(f'''v_lshlrev_b32 v29, 14, v20
v_lshl_add_u32 v29, v22, 4, v29''')
    PB=144
    for c in range(4):
        for m in range(4):
            a.I(f'v_cvt_pk_bf16_f32 v{PB+4*c+m}, v{KF+4*(7-2*m)+c}, v{KF+4*(6-2*m)+c}')
        a.I(f's_mov_b32 s72, {KVF+4096*c}')
        a.VM(f'buffer_store_dwordx4 {R(PB+4*c)}, v29, {WS}, s72 offen sc1','kvst')
    stamp('p0 stored')
    get_tag()
    a.I(f's_mov_b32 s72, {X0T}')
    a.wait(vm='q')
    for j in range(4):
        a.VM(f'buffer_store_dwordx4 {R(QB+4*j)}, v28, {WS}, s72 offen offset:{128*j} sc1','qst')
    a.C('E4 build')
    a.I(f'''s_mul_i32 s78, {sW}, {CW}
v_add_u32 v30, s78, {vL16}''')
    for cgp in range(4):
        for m in range(4):
            b=EB+16*cgp+4*m
            a.I(f'v_alignbit_b32 v{b+3}, v{b+2}, v{b+1}, 16\nv_alignbit_b32 v{b+2}, v{b+1}, v{b}, 16')
            a.LG(f'ds_write_b128 v30, {R(b)} offset:{32+m*EPL+cgp*1024}')
    a.I(f'''v_readfirstlane_b32 s72, v{EB}
v_readfirstlane_b32 s73, v{EB+2}
v_mov_b32 v32, 0
v_mov_b32 v33, 0
v_mov_b32 v34, 0
v_mov_b32 v35, 0
s_mov_b32 exec_hi, 0''')
    a.LG(f'ds_write_b128 v30, v[32:35] offset:{UOFF}')
    a.I(f'''s_mov_b64 exec, -1
s_lshl_b32 s79, s72, 16
v_mov_b32 v36, 0
v_mov_b32 v37, 0
v_mov_b32 v38, 0
v_mov_b32 v39, 0
v_writelane_b32 v39, s79, 5
v_writelane_b32 v37, s72, 7
v_writelane_b32 v38, s79, 7
v_writelane_b32 v39, s73, 7
v_lshrrev_b32 v31, 1, {vL}
v_mul_u32_u24 v31, {EPL}, v31
v_and_b32 v40, 1, {vL}
v_lshl_add_u32 v31, v40, 4, v31
v_add_u32 v31, s78, v31
s_mov_b64 exec, 0xff''')
    a.LG(f'ds_write_b128 v31, v[36:39]')
    a.I('s_mov_b64 exec, -1')
    stamp('e4 done')
    a.I(f's_lshl_b32 s72, s71, 7\ns_lshl_b32 s73, s70, 2\ns_add_u32 s72, s72, s73\ns_add_u32 s73, s72, {FL_X0}\ns_add_u32 s72, s72, {FL_KV}')
    wg_signal('s72','kvst')
    wg_signal('s73','all')
    a.I(f'''s_waitcnt lgkmcnt(0)
s_lshl_b32 s72, s77, 16
s_and_b32 s73, s77, 0xffff0000
s_bitcmp1_b32 s75, 0
s_cselect_b32 s77, s73, s72''')
    a.lgq=[]
    stamp('p0 signalled')

def conv():
    a.C('conv')
    a.I(f's_lshl_b32 s72, s71, 7\ns_add_u32 s72, s72, {FL_KV}')
    poll(vL4,'s72',16,21,wg=True)
    stamp('kv ready')
    a.I(f's_add_u32 s72, s76, {KVF}')
    for j in range(4):
        a.VM(f'buffer_load_dwordx4 {R(32+4*j)}, {vL16}, {WS}, s72 offen offset:{1024*j} sc1',f'u{j}')
    a.I(f'''v_lshlrev_b32 v21, 3, {vG}
v_sub_u32 v21, {vLo}, v21
v_add_u32 v21, 25, v21''')
    for (dst,add) in ((22,0),(23,4)):
        a.I(f'''v_add_u32 v24, {add}, v21
v_bfe_u32 v25, v24, 1, 2
v_mul_u32_u24 v25, {EPL}, v25
v_lshrrev_b32 v26, 3, v24
v_lshl_add_u32 v25, v26, 4, v25
v_and_b32 v26, 1, v24
v_lshl_add_u32 v25, v26, 3, v25
v_add_u32 v{dst}, s78, v25''')
    a.I(f'''v_lshl_add_u32 v24, {vLo}, 1, {vG}
v_lshlrev_b32 v24, 4, v24
s_add_u32 s72, s78, {UOFF+512-32-448}
v_add_u32 v24, s72, v24''')
    vT1,vT2,vU=22,23,24
    for j in range(4):
        a.wait(vm=f'u{j}')
        a.LG(f'ds_write_b128 v30, {R(32+4*j)} offset:{UOFF+512+1024*j}')
    a.wait(lg='all')
    a.I(f'''v_lshrrev_b32 v25, 1, {vG}
v_lshl_add_u32 v25, {vLo}, 1, v25
v_lshlrev_b32 v25, 4, v25
v_and_b32 v26, 1, {vG}
v_lshlrev_b32 v26, 3, v26
v_sub_u32 v25, v25, v26
s_add_u32 s72, s78, {UOFF+512+8}
v_add_u32 v25, s72, v25
v_lshlrev_b32 v26, 5, {vLo}
v_lshl_add_u32 v26, {vG}, 3, v26
s_mul_i32 s72, {sW}, {YSTR}
s_add_u32 s72, s72, {RED}
v_add_u32 v26, s72, v26
v_lshrrev_b32 v27, 2, {vLo}
v_mul_u32_u24 v27, {YSTR}, v27
v_and_b32 v28, 3, {vL}
v_lshl_add_u32 v27, v28, 3, v27
v_lshl_add_u32 v27, {vG}, 5, v27
s_lshl_b32 s72, {sW}, 9
s_add_u32 s72, s72, {RED}
v_add_u32 v27, s72, v27
v_lshlrev_b32 v28, 3, {vL}
v_mul_u32_u24 v29, 20480, {vG}
v_lshl_add_u32 v31, {vLo}, 3, v29
v_lshl_add_u32 v29, {vLo}, 4, v29''')
    vKV,vYW,vYR,vL8,vX1,vYo=25,26,27,28,29,31
    ACC=32
    FB=[64,128]
    def half(hf):
        na = 4 if hf==0 else 8
        pairs=[(ap,c) for ap in range(na) for c in range(na) if (ap+c<=3 if hf==0 else 4<=ap+c<=7)]
        pairs.sort(key=lambda p:(max(p[0],p[1]) if hf==0 else p[0], p[1]))
        def reads(r):
            fb=FB[r&1]; out=[]; seen=set()
            for (ap,c) in pairs:
                if ('T',ap) not in seen:
                    seen.add(('T',ap))
                    out.append((f'ds_read_b64 {R(fb+4*ap,2)}, v{vT1} offset:{ap*512+r*64}',f'T{r}{ap}a'))
                    out.append((f'ds_read_b64 {R(fb+4*ap+2,2)}, v{vT2} offset:{ap*512+r*64}',f'T{r}{ap}'))
                if ('U',c) not in seen:
                    seen.add(('U',c))
                    out.append((f'ds_read_b128 {R(fb+32+4*c)}, v{vU} offset:{c*512+(7-r)*64}',f'U{r}{c}'))
            return out
        for t,g in reads(0): a.LG(t,g)
        first=set()
        for r in range(8):
            nxt = reads(r+1) if r<7 else []
            fb=FB[r&1]
            per = -(-len(nxt)//len(pairs))
            for (ap,c) in pairs:
                a.wait(lg=[f'T{r}{ap}',f'U{r}{c}'])
                j=ap+c
                cc = R(ACC+4*j) if j in first else '0'
                first.add(j)
                a.I(f'v_mfma_f32_16x16x32_bf16 {R(ACC+4*j)}, {R(fb+4*ap)}, {R(fb+32+4*c)}, {cc}')
                for _ in range(per):
                    if nxt:
                        t,g=nxt.pop(0); a.LG(t,g)
            assert not nxt
    def epi(hf):
        XB=192; SBB=200; KVB=208; TMP=216; YB=224
        a.I(f'''s_lshl_b32 s72, {sW}, 11
s_add_u32 s73, s72, {ST0+hf*8192}
s_lshl_b32 s74, {sCG}, 14
s_add_u32 s72, s72, s74
s_add_u32 s72, s72, {X0T+hf*8192}''')
        for it in range(4):
            a.VM(f'buffer_load_dwordx2 {R(XB+2*it,2)}, v{vL8}, {WS}, s72 offen offset:{512*it} sc1',f'x{it}')
            a.VM(f'buffer_load_dwordx2 {R(SBB+2*it,2)}, v{vL8}, {WS}, s73 offen offset:{512*it} sc1',f's{it}')
        for jl in range(4):
            a.LG(f'ds_read_b64 {R(KVB+2*jl,2)}, v{vKV} offset:{(4*hf+jl)*512}',f'kv{jl}')
        if hf==1: a.I('s_barrier')
        for jl in range(4):
            j=4*hf+jl; ac=ACC+4*j
            a.wait(lg=f'kv{jl}')
            unpack(TMP+3,TMP+2,KVB+2*jl); unpack(TMP+1,TMP+0,KVB+2*jl+1)
            for r in range(4): a.I(f'v_fmac_f32 v{ac+r}, s77, v{TMP+r}')
            a.I(f'v_cvt_pk_bf16_f32 v{ac}, v{ac}, v{ac+1}\nv_cvt_pk_bf16_f32 v{ac+1}, v{ac+2}, v{ac+3}')
            a.LG(f'ds_write_b64 v{vYW}, {R(ac,2)} offset:{512*jl}')
        a.wait(lg='all'); a.I('s_barrier')
        for it in range(4):
            a.LG(f'ds_read_b64_tr_b16 {R(YB+2*it,2)}, v{vYR} offset:{128*it}',f'y{it}')
        a.I(f'''s_mul_i32 s72, {sW}, {16*20480}
s_lshr_b32 s73, {sCG}, 1
s_lshl_b32 s73, s73, 8
s_and_b32 s74, {sCG}, 1
s_lshl_b32 s74, s74, 3
s_add_u32 s73, s73, s74
s_add_u32 s73, s73, s72
s_add_u32 s73, s73, {X1F+hf*64*20480}
s_lshl_b32 s74, {sCG}, 7
s_add_u32 s74, s74, s72
s_add_u32 s74, s74, {YP+hf*64*20480}''')
        for it in range(4):
            a.wait(vm=[f'x{it}',f's{it}'], lg=f'y{it}')
            X=232; Y=236; T=240
            unpack(X,X+1,XB+2*it); unpack(X+2,X+3,XB+2*it+1)
            unpack(Y,Y+1,YB+2*it); unpack(Y+2,Y+3,YB+2*it+1)
            for e in range(4): a.I(f'v_sub_f32 v{T+e}, v{X+e}, v{SBB+2*it}')
            for e in range(4): a.I(f'v_mul_f32 v{T+e}, v{T+e}, v{SBB+2*it+1}')
            for e in range(4): a.I(f'v_fmac_f32 v{X+e}, v{T+e}, v{Y+e}')
            a.I(f'v_cvt_pk_bf16_f32 v{XB+2*it}, v{X}, v{X+1}\nv_cvt_pk_bf16_f32 v{XB+2*it+1}, v{X+2}, v{X+3}')
            a.VM(f'buffer_store_dwordx2 {R(XB+2*it,2)}, v{vX1}, {WS}, s73 offen sc1','st')
            a.VM(f'buffer_store_dwordx2 {R(YB+2*it,2)}, v{vYo}, {WS}, s74 offen sc1','st')
            if it<3: a.I(f's_add_u32 s73, s73, {4*20480}\ns_add_u32 s74, s74, {4*20480}')
    half(0)
    stamp('convA')
    a.I(f's_lshl_b32 s72, s71, 7\ns_add_u32 s72, s72, {FL_X0}')
    poll(vL4,'s72',16,21,wg=True)
    a.I(f's_mov_b32 s72, {FL_Q}')
    poll(vL4,'s72',64,21,wg=True)
    stamp('x0 ready')
    epi(0)
    wg_signal('s68')
    stamp('epiA')
    half(1)
    stamp('convB')
    epi(1)
    a.I('s_add_u32 s72, s68, 0x400')
    wg_signal('s72')
    stamp('epiB')
    a.I('s_branch L_join')

def helper():
    a.L('L_helper')
    a.vmq=['x']; a.lgq=[]
    sHX='s70'
    a.I(f'''s_mul_i32 {sHX}, {sX}, 12
s_add_u32 {sHX}, {sHX}, {sI}
s_sub_u32 {sHX}, {sHX}, 20
s_nop 0''')
    get_tag()
    a.I(f'''v_bfe_u32 v20, {vL}, 2, 2
v_and_b32 v21, 3, {vL}''')
    a.I(f's_cmp_ge_u32 {sHX}, 80\ns_cbranch_scc1 L_h1done')
    srd(TA,22,640*3456); srd(TB,24,640*3456)
    a.I(f'''s_mul_i32 s72, {sHX}, 205
s_lshr_b32 s72, s72, 12
s_mul_i32 s73, s72, 20
s_sub_u32 s73, {sHX}, s73
v_mul_u32_u24 v22, 37, {vL}
v_lshrrev_b32 v22, 8, v22
v_lshlrev_b32 v22, 2, v22
v_sub_u32 v22, {vL16}, v22
s_mul_i32 s74, s72, 864
v_add_u32 v22, s74, v22
s_lshl_b32 s74, s73, 5
s_lshl_b32 s75, {sW}, 3
s_add_u32 s74, s74, s75
s_mul_i32 s74, s74, 3456
s_mul_i32 s75, s75, 1040''')
    for j in range(8):
        for mat,sr in ((0,TA),(1,TB)):
            a.I(f's_add_u32 m0, s75, {mat*33280+j*1040}')
            a.VM(f'buffer_load_dwordx4 v22, {sr}, s74 offen lds')
        a.I('s_add_u32 s74, s74, 3456')
    a.I(f'''v_lshl_add_u32 v23, {vG}, 3, v20
v_mul_u32_u24 v23, 1040, v23
s_mul_i32 s74, {sW}, 224
v_add_u32 v23, s74, v23
v_lshl_add_u32 v24, v21, 4, v23
v_lshl_add_u32 v25, v21, 3, v23
v_and_b32 v26, 1, v21
v_lshl_add_u32 v26, v26, 3, v23
v_lshrrev_b32 v27, 1, v21
v_mul_u32_u24 v27, 33280, v27
v_add_u32 v26, v26, v27''')
    a.I(f'''v_and_b32 v27, 6, {vL}
v_cmp_ne_u32 vcc, 6, v27
v_cndmask_b32 v28, 0, -1, vcc
v_cmp_eq_u32 vcc, 6, {vLo}
v_mov_b32 v27, 0x3f803f80
v_cndmask_b32 v29, 0, v27, vcc
s_lshl_b32 s74, s72, 3
s_lshl_b32 s75, {sW}, 1
s_add_u32 s74, s74, s75
s_mul_i32 s74, s74, 143360
s_mul_i32 s75, s73, 7168
s_add_u32 s74, s74, s75
s_add_u32 s74, s74, {W1F}''')
    a.wait(vm='all'); a.I('s_barrier')
    for sl in range(2):
        for t in range(7):
            b=32+28*sl+4*t
            if t<6:
                mat=t//3; p=t%3
                va = 24 if p<2 else 25
                off = mat*33280 + sl*112 + (8 if p==1 else 0) + (64 if p==2 else 0)
            else:
                va=26; off=sl*112+96
            a.LG(f'ds_read_b64_tr_b16 {R(b,2)}, v{va} offset:{off}')
            a.LG(f'ds_read_b64_tr_b16 {R(b+2,2)}, v{va} offset:{off+4*1040}',f'w{sl}{t}')
    for sl in range(2):
        for t in range(7):
            b=32+28*sl+4*t
            a.wait(lg=f'w{sl}{t}')
            if t==6:
                for e in range(4): a.I(f'v_and_or_b32 v{b+e}, v{b+e}, v28, v29')
            if t==4: a.I('s_add_u32 s74, s74, 4096')
            a.VM(f'buffer_store_dwordx4 {R(b)}, {vL16}, {WS}, s74 offen offset:{(t&3)*1024} sc1')
        a.I(f's_add_u32 s74, s74, {143360-4096}')
    a.I(f's_lshl_b32 s72, s72, 7\ns_lshl_b32 s73, s73, 2\ns_add_u32 s72, s72, s73\ns_add_u32 s72, s72, {FL_W1}')
    wg_signal('s72')
    a.L('L_h1done')
    stamp('h: w1 done')
    a.I(f's_cmp_lt_u32 {sHX}, 32\ns_cbranch_scc1 L_h2done')
    srd(TA,8,2048*1280)
    a.I(f'''s_sub_u32 s72, {sHX}, 32
s_lshl_b32 s72, s72, 5
s_lshl_b32 s73, {sW}, 3
s_add_u32 s72, s72, s73
s_mul_i32 s73, s72, 1280
s_add_u32 s74, s73, 5120
v_mul_u32_u24 v22, 1280, {vG}
v_lshl_add_u32 v22, {vLo}, 4, v22
s_lshl_b32 s72, s72, 3
s_add_u32 s72, s72, {ST0}
v_lshlrev_b32 v23, 3, {vG}''')
    for st in range(2):
        for i in range(5):
            a.VM(f'buffer_load_dwordx4 {R(32+20*st+4*i)}, v22, {TA}, s{73+st} offen offset:{256*i}',f'q{st}')
    def rowred(v):
        for k in (8,4,2,1):
            a.I(f'v_add_f32_dpp v{v}, v{v}, v{v} row_ror:{k} row_mask:0xf bank_mask:0xf')
    for st in range(2):
        a.wait(vm=f'q{st}')
        Fb=80
        for i in range(20): unpack(Fb+2*i,Fb+2*i+1,32+20*st+i)
        a.I(f'v_pk_add_f32 v[24:25], {R(Fb,2)}, {R(Fb+2,2)}')
        for i in range(2,20): a.I(f'v_pk_add_f32 v[24:25], v[24:25], {R(Fb+2*i,2)}')
        a.I('v_add_f32 v24, v24, v25')
        rowred(24)
        a.I('v_mul_f32 v24, 0x3acccccd, v24')
        for i in range(20): a.I(f'v_pk_add_f32 {R(Fb+2*i,2)}, {R(Fb+2*i,2)}, v[24:25] op_sel_hi:[1,0] neg_lo:[0,1] neg_hi:[0,1]')
        a.I(f'v_pk_mul_f32 v[26:27], {R(Fb,2)}, {R(Fb,2)}')
        for i in range(1,20): a.I(f'v_pk_fma_f32 v[26:27], {R(Fb+2*i,2)}, {R(Fb+2*i,2)}, v[26:27]')
        a.I('v_add_f32 v25, v26, v27')
        rowred(25)
        a.I('v_mul_f32 v25, 0x3acccccd, v25')
        ln_scalars(24,25)
        a.I('s_mov_b32 exec_lo, 0x00010001\ns_mov_b32 exec_hi, 0x00010001')
        a.VM(f'buffer_store_dwordx2 v[24:25], v23, {WS}, s72 offen offset:{32*st} sc1')
        a.I('s_mov_b64 exec, -1\ns_nop 1')
    a.I(f's_lshl_b32 s72, {sHX}, 2\ns_add_u32 s72, s72, {FL_Q-128}')
    wg_signal('s72')
    a.L('L_h2done')
    stamp('h: q done')
    a.I(f'''s_sub_u32 s72, {sHX}, 32
s_cmp_lt_u32 s72, 32
s_cbranch_scc1 L_h3done
s_cmp_lt_u32 {sHX}, 32
s_cselect_b32 s72, {sHX}, s72
s_lshr_b32 s73, s72, 1
s_and_b32 s72, s72, 1''')
    srd(TA,26,1728*1280)
    a.I(f'''s_mul_i32 s74, s73, {54*1280}
s_mul_i32 s75, s72, 640
s_add_u32 s74, s74, s75
s_mov_b32 s76, 1639''')
    ZROW=36*1024
    a.I(f'''v_mov_b32 v32, 0
v_mov_b32 v33, 0
v_mov_b32 v34, 0
v_mov_b32 v35, 0''')
    a.LG(f'ds_write_b128 {vL16}, v[32:35] offset:{ZROW}')
    for j in range(9):
        a.I(f'''v_add_u32 v22, {256*j}, v0
v_mul_u32_u24 v23, s76, v22
v_lshrrev_b32 v23, 16, v23
v_mul_u32_u24 v23, 640, v23
v_lshl_add_u32 v22, v22, 4, v23
s_lshl_b32 s75, {sW}, 10
s_add_u32 m0, s75, {4096*j}''')
        a.VM(f'buffer_load_dwordx4 v22, {TA}, s74 offen lds')
    a.I(f'''v_lshl_add_u32 v24, {vG}, 3, v20
v_mul_u32_u24 v24, 640, v24
v_lshl_add_u32 v25, {vG}, 2, v20
v_add_u32 v25, 32, v25
v_mul_u32_u24 v25, 640, v25
v_lshlrev_b32 v26, 3, {vG}
v_mov_b32 v27, 0x30323430
v_mov_b32 v28, 0x2c002e2c
v_lshrrev_b32 v27, v26, v27
v_lshrrev_b32 v28, v26, v28
v_and_b32 v27, 0xff, v27
v_and_b32 v28, 0xff, v28
v_cmp_gt_u32 vcc, 2, v20
v_cndmask_b32 v26, v28, v27, vcc
v_and_b32 v27, 1, v20
v_add_u32 v27, v26, v27
v_mul_u32_u24 v27, 640, v27
v_cmp_eq_u32 vcc, 0, v26
v_mov_b32 v28, {ZROW}
v_cndmask_b32 v26, v27, v28, vcc
s_mul_i32 s75, {sW}, 160
v_lshl_add_u32 v27, v21, 3, s75
v_add_u32 v24, v24, v27
v_add_u32 v25, v25, v27
v_add_u32 v26, v26, v27''')
    a.I(f's_mul_i32 s75, s73, 7')
    for rd,dst in ((0,28),(1,29)):
        a.I(f'''v_add_u32 v30, s75, {vG}
v_add_u32 v30, {4*rd}, v30
v_lshrrev_b32 v31, 2, v30
v_mul_u32_u24 v31, 5120, v31
v_and_b32 v30, 3, v30
v_lshl_add_u32 v31, v30, 8, v31
v_lshl_add_u32 v{dst}, {vLo}, 4, v31''')
    a.I(f'''s_lshl_b32 s74, s72, 2
s_add_u32 s74, s74, {sW}
s_mul_i32 s74, s74, 286720
s_add_u32 s74, s74, {W2F}
s_add_u32 s75, s74, 4096''')
    a.wait(vm='all',lg='all'); a.I('s_barrier')
    for rd in range(2):
        for t in range(5):
            b=32+20*rd+4*t
            if rd==0:
                a.LG(f'ds_read_b64_tr_b16 {R(b,2)}, v24 offset:{32*t}')
                a.LG(f'ds_read_b64_tr_b16 {R(b+2,2)}, v24 offset:{32*t+4*640}',f'z{rd}{t}')
            else:
                a.LG(f'ds_read_b64_tr_b16 {R(b,2)}, v25 offset:{32*t}')
                a.LG(f'ds_read_b64_tr_b16 {R(b+2,2)}, v26 offset:{32*t}',f'z{rd}{t}')
    for rd in range(2):
        if rd==1:
            a.wait(lg='all')
            a.I('s_mov_b32 exec_hi, 0xffff')
        for t in range(5):
            b=32+20*rd+4*t
            a.wait(lg=f'z{rd}{t}')
            a.VM(f'buffer_store_dwordx4 {R(b)}, v{28+rd}, {WS}, s{74+(t>>2)} offen offset:{(t&3)*1024} sc1')
    a.I('s_mov_b64 exec, -1')
    a.I(f's_lshl_b32 s72, s72, 7\ns_lshl_b32 s73, s73, 2\ns_add_u32 s72, s72, s73\ns_add_u32 s72, s72, {FL_W2}')
    wg_signal('s72')
    a.L('L_h3done')
    stamp('h: w2 done')

W2X=232
def w2reg(i):
    return R(4*i,4,'a') if i<64 else R(W2X+4*(i-64))
def load_weights():
    a.L('L_join')
    a.vmq=['x']; a.lgq=[]
    a.C('wait for everything in front (init done everywhere, W1F, W2F)')
    a.I(f's_lshr_b32 s72, {sFS}, 3\ns_lshl_b32 s72, s72, 7\ns_add_u32 s72, s72, {FL_W1}')
    poll(vL4,'s72',20,21,wg=True,sleep=4)
    a.I(f's_lshr_b32 s72, {sCS}, 2\ns_lshl_b32 s72, s72, 7\ns_add_u32 s72, s72, {FL_W2}')
    poll(vL4,'s72',32,21,wg=True,sleep=4)
    stamp('front flags')
    a.I(f'''s_mul_i32 s72, {sFS}, 143360
s_add_u32 s72, s72, {W1F}
s_mul_i32 s73, {sW}, 7168
s_add_u32 s72, s72, s73
s_sub_u32 s73, {w1off(0)}, s73''')
    for j in range(5):
        for half in range(2):
            a.I(f's_add_u32 m0, s73, {half*4096}\ns_add_u32 s74, s72, {half*4096}')
            for t in range(4 if half==0 else 3):
                a.VM(f'buffer_load_dwordx4 {vL16}, {WS}, s74 offen offset:{t*1024} sc1 lds','w1')
        a.I(f's_add_u32 s72, s72, {4*7168}\ns_sub_u32 s73, s73, {4*7168}')
    a.I(f'''s_mul_i32 s72, {sCS}, 286720
s_mul_i32 s73, {sW}, 71680
s_add_u32 s72, s72, s73
s_add_u32 s72, s72, {W2F}''')
    for i in range(70):
        if i==28: a.wait(vm='w1')
        a.VM(f'buffer_load_dwordx4 {w2reg(i)}, {vL16}, {WS}, s72 offen offset:{(i&3)*1024} sc1','w2')
        if i&3==3: a.I('s_add_u32 s72, s72, 4096')
    a.I('s_barrier')
    a.I(f'''v_add_u32 v6, {0}, {vL16}
v_add_u32 v7, {8*7168}, {vL16}
v_add_u32 v8, {16*7168}, {vL16}''')
    stamp('w1 loaded')
    a.I(f's_cmp_lg_u32 {sRB}, 3\ns_cbranch_scc1 L_nocs')
    a.I(f'''s_mul_i32 s72, {sW}, {5*7168}
v_add_u32 v20, s72, {vL16}
v_mov_b32 v24, 0x3f803f80
v_mov_b32 v25, 0x3f803f80
v_mov_b32 v26, 0x3f803f80
v_mov_b32 v27, 0x3f803f80''')
    for k in range(5):
        for t in range(7): a.LG(f'ds_read_b128 {R(64+4*t)}, v20 offset:{k*7168+t*1024}',f'c{t}')
        for t in range(7):
            a.wait(lg=f'c{t}')
            a.I(f'v_mfma_f32_16x16x32_bf16 {R(32+4*t)}, {R(64+4*t)}, v[24:27], {R(32+4*t) if k else "0"}')
    a.I(f'''s_lshl_b32 s72, {sW}, 9
s_add_u32 s72, s72, {RED}
v_lshl_add_u32 v21, {vG}, 4, s72
s_mov_b32 exec_lo, 0x00010001
s_mov_b32 exec_hi, 0x00010001''')
    for t in range(7): a.LG(f'ds_write_b128 v21, {R(32+4*t)} offset:{64*t}')
    a.I('s_mov_b64 exec, -1')
    a.wait(lg='all'); a.I('s_barrier')
    a.I(f'v_lshlrev_b32 v21, 3, {vL}\nv_add_u32 v22, {RED}, v21')
    for w in range(4): a.LG(f'ds_read_b64 {R(32+2*w,2)}, v22 offset:{512*w}')
    a.wait(lg='all')
    a.I(f'''v_pk_add_f32 v[32:33], v[32:33], v[34:35]
v_pk_add_f32 v[36:37], v[36:37], v[38:39]
v_pk_add_f32 v[32:33], v[32:33], v[36:37]
s_lshl_b32 s72, {sFS}, 9
s_add_u32 s72, s72, {CSUM}''')
    a.VM(f'buffer_store_dwordx2 v[32:33], v21, {WS}, s72 offen sc1')
    a.I(f's_lshl_b32 s72, {sFS}, 2\ns_add_u32 s72, s72, {FL_CS}')
    wg_signal('s72')
    a.L('L_nocs')
    a.vmq=['x']
    a.I(f'''v_lshrrev_b32 v9, 2, {vLo}
v_lshl_add_u32 v9, v9, 4, {vLo}
v_lshlrev_b32 v9, 2, v9
v_lshlrev_b32 v10, 2, {vLo}
v_add_u32 v10, 64, v10
v_and_b32 v20, 3, {vL}
v_cmp_eq_u32 s[80:81], 1, v20
v_cmp_eq_u32 s[82:83], 2, v20
v_cmp_eq_u32 s[84:85], 3, v20
v_cmp_gt_u32 s[86:87], 40, {vL}''')
    a.I(f'''s_mul_i32 s72, {sW}, 5120
s_add_u32 s72, s72, {RED}
v_lshrrev_b32 v21, 1, {vG}
v_lshl_add_u32 v21, v21, 2, {vLo}
v_and_b32 v22, 15, v21
v_lshlrev_b32 v22, 4, v22
v_lshl_add_u32 v22, {vG}, 8, v22
v_add_u32 v11, s72, v22
v_add_u32 v21, 8, v21
v_and_b32 v22, 15, v21
v_lshlrev_b32 v22, 4, v22
v_lshl_add_u32 v22, {vG}, 8, v22
v_add_u32 v12, s72, v22''')
    a.I(f'''v_lshrrev_b32 v21, 2, {vL}
v_min_u32 v21, 9, v21
v_add_u32 v22, {sW}, v21
v_lshl_add_u32 v22, v22, 2, v20
v_and_b32 v22, 15, v22
v_lshlrev_b32 v22, 4, v22
v_lshl_add_u32 v22, v21, 9, v22
v_add_u32 v13, {RED}, v22''')

def w1addr(ks,t):
    o=w1off(ks)+t*1024
    b=o//(8*7168)
    return f'v{6+b}', o-b*8*7168

def g1(layer, hf):
    a.C(f'G1 layer {layer} half {hf}')
    XSRC = X1F if layer==0 else X3F
    HDST = H1F if layer==0 else H2F
    ACC=32; DG=88; WF=96; XR=124; NX=24; CSB=124; T0=96
    if layer==0:
        a.I(f's_mov_b32 s72, {FL_XA if hf==0 else FL_XB}')
        poll(vL16,'s72',40,224,wide=True,wg=True,sleep=4); a.wait(vm='all')
    else:
        a.I(f'''s_lshl_b32 s72, {sRB}, 2
s_add_u32 s72, s72, {sW}
s_lshl_b32 s72, s72, 7
s_add_u32 s72, s72, {FL_X3+hf*4096}''')
        poll(vL4,'s72',32,221)
    stamp(f'g1 {layer}{hf} in')
    a.I(f'''s_lshl_b32 s75, {sRB}, 2
s_add_u32 s75, s75, {sW}
s_mul_i32 s72, s75, {2*20480}
s_add_u32 s72, s72, {XSRC+hf*64*20480}
s_add_u32 s73, s72, 20480''')
    def xload(ks):
        for tt in range(2):
            sl=(2*ks+tt)%NX
            a.VM(f'buffer_load_dwordx4 {R(XR+4*sl)}, {vL16}, {WS}, s{72+tt} offen offset:{(ks&3)*1024} sc1',f'x{ks}')
        if ks&3==3: a.I('s_add_u32 s72, s72, 4096\ns_add_u32 s73, s73, 4096')
    def wread(ks,t):
        v,o=w1addr(ks,t); a.LG(f'ds_read_b128 {R(WF+4*t)}, {v} offset:{o}',f'w{ks}_{t}')
    PF=NX//2
    for ks in range(PF): xload(ks)
    for t in range(7): wread(0,t)
    for ks in range(20):
        x0=XR+4*((2*ks)%NX); x1=XR+4*((2*ks+1)%NX)
        a.wait(vm=f'x{ks}')
        for tt,xx in ((0,x0),(1,x1)):
            a.I(f'v_mfma_f32_16x16x32_bf16 {R(DG+4*tt)}, {R(xx)}, {R(xx)}, {R(DG+4*tt) if ks else "0"}')
        for t in range(7):
            a.wait(lg=f'w{ks}_{t}')
            for tt,xx in ((0,x0),(1,x1)):
                ac=ACC+28*tt+4*t
                a.I(f'v_mfma_f32_16x16x32_bf16 {R(ac)}, {R(WF+4*t)}, {R(xx)}, {R(ac) if ks else "0"}')
            if ks<19: wread(ks+1,t)
        if ks+PF<20: xload(ks+PF)
    stamp(f'g1 {layer}{hf} loop')
    if layer==0 and hf==0:
        a.I(f's_lshl_b32 s72, {sFS}, 2\ns_add_u32 s72, s72, {FL_CS}')
        poll(vL4,'s72',1,221)
    a.I(f's_lshl_b32 s72, {sFS}, 9\ns_add_u32 s72, s72, {CSUM}\nv_lshlrev_b32 v220, 4, {vG}')
    for t in range(7):
        a.VM(f'buffer_load_dwordx4 {R(CSB+4*t)}, v220, {WS}, s72 offen offset:{64*t} sc1','cs')
    a.I(f'''s_mul_i32 s72, s75, {2*57344}
s_mul_i32 s73, {sFS}, 1792
s_add_u32 s72, s72, s73
s_add_u32 s72, s72, {HDST+hf*64*57344}''')
    for tt in range(2):
        d=DG+4*tt; m=T0+8*tt
        a.I(f'''v_cndmask_b32 v{d}, v{d}, v{d+1}, s[80:81]
v_cndmask_b32 v{d}, v{d}, v{d+2}, s[82:83]
v_cndmask_b32 v{d}, v{d}, v{d+3}, s[84:85]''')
        a.LG(f'ds_bpermute_b32 v{m+1}, v9, v{d}')
        a.LG(f'ds_bpermute_b32 v{m}, v10, v{ACC+28*tt+24+2}',f'bp{tt}')
    for tt in range(2):
        m=T0+8*tt; A=ACC+28*tt
        a.wait(lg=f'bp{tt}')
        a.I(f'''v_mul_f32 v{m}, 0x3acccccd, v{m}
v_mul_f32 v{m+1}, 0x3acccccd, v{m+1}
v_fma_f32 v{m+1}, -v{m}, v{m}, v{m+1}
v_max_f32 v{m+1}, 0, v{m+1}''')
        ln_scalars(m,m+1)
        a.I(f'v_mul_f32 v{m+1}, v{m+1}, v{m+1}')
        a.wait(vm='cs')
        for i in range(14):
            a.I(f'v_pk_fma_f32 {R(A+2*i,2)}, {R(CSB+2*i,2)}, {R(m,2)}, {R(A+2*i,2)} op_sel_hi:[1,0,1] neg_lo:[0,1,0] neg_hi:[0,1,0]')
        a.I(f'v_permlane32_swap_b32 v{A+24}, v{A+26}\nv_permlane32_swap_b32 v{A+25}, v{A+27}')
        for i in range(6):
            a.I(f'v_pk_mul_f32 {R(A+2*i,2)}, {R(A+2*i,2)}, {R(A+12+2*i,2)}')
        a.I(f'v_pk_mul_f32 {R(A+12,2)}, {R(A+24,2)}, {R(A+26,2)}')
        for i in range(7):
            a.I(f'v_pk_mul_f32 {R(A+2*i,2)}, {R(A+2*i,2)}, {R(m,2)} op_sel:[0,1] op_sel_hi:[1,1]')
        O=A+16
        for i in range(7): a.I(f'v_cvt_pk_bf16_f32 v{O+i}, v{A+2*i}, v{A+2*i+1}')
        for i in range(3): a.I(f'v_mov_b32 v{A+24+i}, v{O+4+i}')
        a.VM(f'buffer_store_dwordx4 {R(O)}, {vL16}, {WS}, s72 offen sc1','hst')
        a.I(f'''v_permlane16_swap_b32 v{A+24}, v{A+25}
v_permlane16_swap_b32 v{A+26}, v{O+7}
v_permlane32_swap_b32 v{A+25}, v{O+7}
s_mov_b32 exec_hi, 0xffff''')
        a.VM(f'buffer_store_dwordx4 {R(O+4)}, {vL16}, {WS}, s72 offen offset:1024 sc1','hst')
        a.I(f's_mov_b64 exec, -1\ns_add_u32 s72, s72, 57344')
    a.wait(vm='all')
    a.I(f's_add_u32 s72, s66, {(layer*2+hf)*4096}')
    wave_signal('s72')
    stamp(f'g1 {layer}{hf} done')

X3K=16
def g2(layer, hf):
    a.C(f'G2 layer {layer} half {hf}')
    HSRC = H1F if layer==0 else H2F
    HR=32; ACC=144; PB=184; XR=216; YR=224
    a.I(f'''s_lshl_b32 s72, {sTB}, 7
s_lshl_b32 s73, {sW}, 5
s_add_u32 s72, s72, s73
s_add_u32 s72, s72, {FL_H+(layer*2+hf)*4096}''')
    poll(vL4,'s72',8,145)
    stamp(f'g2 {layer}{hf} in')
    a.I(f'''s_mul_i32 s72, {sTB}, {2*57344}
s_mul_i32 s73, {sW}, {14*1024}
s_add_u32 s72, s72, s73
s_add_u32 s72, s72, {HSRC+hf*64*57344}''')
    for tt in range(2):
        for k in range(14):
            a.VM(f'buffer_load_dwordx4 {R(HR+56*tt+4*k)}, {vL16}, {WS}, s72 offen offset:{(k&3)*1024} sc1',f'h{tt}_{k}')
            if k&3==3: a.I('s_add_u32 s72, s72, 4096')
        a.I(f's_add_u32 s72, s72, {57344-3*4096}')
    vXo,vYo,vOo,vSo,vSi=PB+24,PB+25,PB+26,PB+27,PB+28
    a.I(f'''v_lshrrev_b32 v{PB}, 2, {vL}
v_min_u32 v{PB}, 9, v{PB}
v_and_b32 v{PB+1}, 3, {vL}
v_lshlrev_b32 v{vXo}, 8, v{PB}
v_lshl_add_u32 v{vYo}, v{PB+1}, 3, v{vXo}
v_lshl_add_u32 v{vXo}, v{PB+1}, 4, v{vXo}
v_mul_u32_u24 v{vOo}, 1280, v{PB+1}
v_lshl_add_u32 v{vOo}, v{PB}, 4, v{vOo}
v_lshlrev_b32 v{vSo}, 7, v{PB+1}
v_bfe_u32 v{PB}, {vL}, 2, 3
v_lshl_add_u32 v{vSi}, v{PB}, 4, v{vSo}
s_mul_i32 s73, {sTB}, {2*20480}
s_mul_i32 s74, {sCS}, 2560
s_add_u32 s73, s73, s74
s_add_u32 s73, s73, {hf*64*20480}
s_lshl_b32 s74, {sW}, 5
s_add_u32 s75, s73, s74
s_add_u32 s73, s75, s74''')
    if layer==0:
        for tt in range(2):
            a.I(f's_add_u32 s74, s73, {X1F+tt*20480}\ns_add_u32 s76, s75, {YP+tt*20480}')
            a.VM(f'buffer_load_dwordx4 {R(XR+4*tt)}, v{vXo}, {WS}, s74 offen sc1',f'xr{tt}')
            a.VM(f'buffer_load_dwordx2 {R(YR+4*tt,2)}, v{vYo}, {WS}, s76 offen sc1',f'xr{tt}')
            a.VM(f'buffer_load_dwordx2 {R(YR+4*tt+2,2)}, v{vYo}, {WS}, s76 offen offset:128 sc1',f'xr{tt}')
    for tt in range(2):
        for k in range(14):
            a.wait(vm=f'h{tt}_{k}')
            for t in range(5):
                ac=ACC+20*tt+4*t
                a.I(f'v_mfma_f32_16x16x32_bf16 {R(ac)}, {w2reg(5*k+t)}, {R(HR+56*tt+4*k)}, {R(ac) if k else "0"}')
    stamp(f'g2 {layer}{hf} loop')
    X2=HR+64
    for tt in range(2):
        a.I('s_barrier')
        for t in range(5):
            a.LG(f'ds_write_b128 v{11+(t&1)}, {R(ACC+20*tt+4*t)} offset:{t*1024}')
        a.wait(lg='all'); a.I('s_barrier')
        P=HR
        for w in range(4):
            for e in range(2):
                a.LG(f'ds_read_b128 {R(P+8*w+4*e)}, v13 offset:{w*5120+e*256}',f'p{w}')
        a.wait(lg='p1')
        for i in range(4): a.I(f'v_pk_add_f32 {R(P+2*i,2)}, {R(P+2*i,2)}, {R(P+8+2*i,2)}')
        a.wait(lg='p3')
        for i in range(4): a.I(f'v_pk_add_f32 {R(P+16+2*i,2)}, {R(P+16+2*i,2)}, {R(P+24+2*i,2)}')
        for i in range(4): a.I(f'v_pk_add_f32 {R(P+2*i,2)}, {R(P+2*i,2)}, {R(P+16+2*i,2)}')
        for i in range(4): a.I(f'v_cvt_pk_bf16_f32 v{P+8+i}, v{P+2*i}, v{P+2*i+1}')
        for i in range(4): unpack(P+2*i,P+2*i+1,P+8+i)
        res = XR+4*tt if layer==0 else X3K+4*(2*hf+tt)
        if layer==0: a.wait(vm=f'xr{tt}')
        for i in range(4): unpack(P+16+2*i,P+16+2*i+1,res+i)
        for i in range(4): a.I(f'v_pk_add_f32 {R(P+2*i,2)}, {R(P+2*i,2)}, {R(P+16+2*i,2)}')
        for i in range(4): a.I(f'v_cvt_pk_bf16_f32 v{P+8+i}, v{P+2*i}, v{P+2*i+1}')
        if layer==1:
            a.I(f'''s_lshl_b32 s74, {sTB}, 3
s_add_u32 s74, s74, {sW}
s_mul_i32 s74, s74, {4*1280}
s_mul_i32 s76, {sCS}, 160
s_add_u32 s74, s74, s76
s_add_u32 s74, s74, {(1024*hf+16*tt)*1280}
s_mov_b64 exec, s[86:87]''')
            a.VM(f'buffer_store_dwordx4 {R(P+8)}, v{vOo}, {OUT}, s74 offen')
            a.I('s_mov_b64 exec, -1\ns_nop 1')
        else:
            x2=X2+8*tt
            for i in range(4): unpack(x2+2*i,x2+2*i+1,P+8+i)
            S=P+16
            a.I(f'''v_pk_add_f32 {R(S,2)}, {R(x2,2)}, {R(x2+2,2)}
v_pk_mul_f32 {R(S+2,2)}, {R(x2,2)}, {R(x2,2)}
v_pk_add_f32 {R(S,2)}, {R(S,2)}, {R(x2+4,2)}
v_pk_fma_f32 {R(S+2,2)}, {R(x2+2,2)}, {R(x2+2,2)}, {R(S+2,2)}
v_pk_add_f32 {R(S,2)}, {R(S,2)}, {R(x2+6,2)}
v_pk_fma_f32 {R(S+2,2)}, {R(x2+4,2)}, {R(x2+4,2)}, {R(S+2,2)}
v_pk_fma_f32 {R(S+2,2)}, {R(x2+6,2)}, {R(x2+6,2)}, {R(S+2,2)}
v_add_f32 v{S}, v{S}, v{S+1}
v_add_f32 v{S+1}, v{S+2}, v{S+3}
v_cndmask_b32 v{S}, 0, v{S}, s[86:87]
v_cndmask_b32 v{S+1}, 0, v{S+1}, s[86:87]''')
            red4(S,S+4)
            a.I(f'''v_mov_b32 v{S+2}, {vTAG}
v_mov_b32 v{S+3}, {vTAG}
s_lshl_b32 s74, {sCS}, 4
s_add_u32 s74, s74, s69
s_add_u32 s74, s74, {(1024*hf+16*tt)*128}
s_mov_b64 exec, 0xf''')
            a.VM(f'buffer_store_dwordx4 {R(S)}, v{vSo}, {WS}, s74 offen sc1')
            a.I('s_mov_b64 exec, -1\ns_nop 1')
    stamp(f'g2 {layer}{hf} red')
    if layer==0:
        for tt in range(2):
            x2=X2+8*tt; S=HR; Yf=HR+8; T=HR+16
            L=a.newlabel('Lst'); Ld=a.newlabel('Lstd')
            a.I(f's_add_u32 s74, s69, {(1024*hf+16*tt)*128}\ns_mov_b32 {sSPIN}, 0')
            a.L(L)
            a.I(f'''buffer_load_dwordx4 {R(S)}, v{vSi}, {WS}, s74 offen sc1
s_waitcnt vmcnt(0)
v_cmp_ne_u32 vcc, {vTAG}, v{S+3}
s_cbranch_vccz {Ld}
s_sleep 1
s_add_u32 {sSPIN}, {sSPIN}, 1
s_cmp_lt_u32 {sSPIN}, {SPIN_LIMIT}
s_cbranch_scc1 {L}''')
            a.L(Ld); a.vmq=[]
            for v in (S,S+1):
                for k in (4,8):
                    a.I(f'v_add_f32_dpp v{v}, v{v}, v{v} row_ror:{k} row_mask:0xf bank_mask:0xf')
            a.I(f'''v_mov_b32 v{S+4}, v{S}
v_mov_b32 v{S+5}, v{S+1}
v_permlane16_swap_b32 v{S}, v{S+4}
v_permlane16_swap_b32 v{S+1}, v{S+5}
v_add_f32 v{S}, v{S}, v{S+4}
v_add_f32 v{S+1}, v{S+1}, v{S+5}
v_mul_f32 v{S}, 0x3acccccd, v{S}
v_mul_f32 v{S+1}, 0x3acccccd, v{S+1}
v_fma_f32 v{S+1}, -v{S}, v{S}, v{S+1}
v_max_f32 v{S+1}, 0, v{S+1}''')
            ln_scalars(S,S+1)
            for i in range(4): unpack(Yf+2*i,Yf+2*i+1,YR+4*tt+i)
            for i in range(4): a.I(f'v_pk_add_f32 {R(T+2*i,2)}, {R(x2+2*i,2)}, {R(S,2)} op_sel_hi:[1,0] neg_lo:[0,1] neg_hi:[0,1]')
            for i in range(4): a.I(f'v_pk_mul_f32 {R(T+2*i,2)}, {R(T+2*i,2)}, {R(S,2)} op_sel:[0,1] op_sel_hi:[1,1]')
            for i in range(4): a.I(f'v_pk_fma_f32 {R(T+2*i,2)}, {R(T+2*i,2)}, {R(Yf+2*i,2)}, {R(x2+2*i,2)}')
            K=X3K+4*(2*hf+tt)
            for i in range(4): a.I(f'v_cvt_pk_bf16_f32 v{K+i}, v{T+2*i}, v{T+2*i+1}')
            a.I(f's_add_u32 s74, s73, {X3F+tt*20480}\ns_mov_b64 exec, s[86:87]')
            a.VM(f'buffer_store_dwordx4 {R(K)}, v{vXo}, {WS}, s74 offen sc1')
            a.I('s_mov_b64 exec, -1')
        a.wait(vm='all')
        a.I(f's_add_u32 s72, s67, {hf*4096}')
        wave_signal('s72')
        stamp(f'g2 {layer}{hf} done')

def red4(S,T):
    for v in (S,S+1):
        for k in (4,8):
            a.I(f'v_add_f32_dpp v{v}, v{v}, v{v} row_ror:{k} row_mask:0xf bank_mask:0xf')
    for sw in ('16','32'):
        a.I(f'''v_mov_b32 v{T}, v{S}
v_mov_b32 v{T+1}, v{S+1}
v_permlane{sw}_swap_b32 v{S}, v{T}
v_permlane{sw}_swap_b32 v{S+1}, v{T+1}
v_add_f32 v{S}, v{S}, v{T}
v_add_f32 v{S+1}, v{S+1}, v{T+1}''')

def main():
    prologue()
    p0(); conv()
    n_conv=nstamp[0]
    nstamp[0]=1
    helper()
    nstamp[0]=n_conv
    load_weights()
    done=False
    for layer in range(2):
        for fn,hf in ((g1,0),(g1,1),(g2,0),(g2,1)):
            if STOP and STOP==f'{fn.__name__}{layer}{hf}': done=True
            if not done: fn(layer,hf)
    a.C('epoch bump: WG0 wave0, after seeing a tagged flag from every WG')
    a.I(f's_or_b32 s72, s2, {sW}\ns_cmp_lg_u32 s72, 0\ns_cbranch_scc1 L_noep')
    a.I(f'v_lshrrev_b32 v32, 3, {vL}\nv_lshlrev_b32 v32, 9, v32\nv_and_b32 v33, 7, {vL}\nv_lshl_add_u32 v32, v33, 4, v32\ns_mov_b32 s72, {FL_H}')
    poll('v32','s72',64,36,wide=True)
    a.I(f's_mov_b32 s72, {EPOCH}')
    wave_signal('s72')
    a.L('L_noep')
    if STAMPS:
        stamp('end')
        a.I(f'''s_lshl_b32 s72, s2, 10
s_lshl_b32 s73, {sW}, 8
s_add_u32 s72, s72, s73
s_add_u32 s72, s72, {STMP}
buffer_store_dword {vST}, {vL4}, {WS}, s72 offen''')
    a.L('L_end')
    a.I('s_endpgm')
    body=a.finalize()
    hdr=open(os.path.join(os.path.dirname(__file__),'..','cdna_kernels',NAME+'.s.ref')).read().split('; Override launch')[0]
    txt=hdr+f'''; @launch grid=(256,1,1) block=(256,1,1) lds=163840
.amdgcn_target "amdgcn-amd-amdhsa--gfx950"
.text
.globl {NAME}_kernel
.p2align 8
.type {NAME}_kernel,@function
{NAME}_kernel:
{body}.section .rodata,"a"
.p2align 6
.amdhsa_kernel {NAME}_kernel
  .amdhsa_next_free_vgpr 512
  .amdhsa_next_free_sgpr 102
  .amdhsa_accum_offset 256
  .amdhsa_group_segment_fixed_size 0
  .amdhsa_kernarg_size 104
  .amdhsa_user_sgpr_count 2
  .amdhsa_user_sgpr_kernarg_segment_ptr 1
  .amdhsa_system_sgpr_workgroup_id_x 1
.end_amdhsa_kernel
'''
    out=sys.argv[1] if len(sys.argv)>1 else os.path.join(os.path.dirname(__file__),'..','cdna_kernels',NAME+'.s')
    open(out,'w').write(txt)
    if STAMPS: open(out+'.stamps','w').write('\n'.join(stamp_names))
    print('written',out,'nops',a.nnop,'lines',txt.count('\n'))
main()
```
